```python
import torch

def _softmax(x, axis=-1):
    return torch.softmax(x, dim=axis)
def _gelu(x):
    return torch.nn.functional.gelu(x, approximate="tanh")
def _silu(x):
    return torch.nn.functional.silu(x)
def _sigmoid(x):
    return torch.sigmoid(x)
def _layernorm(x, axis=-1, eps=1e-5):
    m = x.mean(dim=axis, keepdim=True)
    v = x.var(dim=axis, keepdim=True, unbiased=False)
    return (x - m) / torch.sqrt(v + eps)
def _scatter_add(tgt, idx, src, axis=0):
    return tgt.clone().index_add_(axis, idx, src)
def _segment_sum(src, seg, n):
    out = torch.zeros((n,) + src.shape[1:], dtype=src.dtype)
    return out.index_add_(0, seg, src)
def _pad(x, pw):
    flat = tuple(v for pair in reversed(pw) for v in pair)
    return torch.nn.functional.pad(x, flat)

kernel_name = 'sequential_preLN__sliding_block__glu_gated_bilinear__prompt'

def setup_inputs():

    _w = (lambda a: (lambda t: t.to(torch.bfloat16) if t.is_floating_point() else t)(torch.as_tensor(a)))
    def _A_setup():
        B, S, D = 1, 2048, 512
        return {
            "x": _w((lambda *s: torch.randn(*s, dtype=torch.bfloat16) * 0.05)(B, S, D)),
            "wqkv": _w((lambda *s: torch.randn(*s, dtype=torch.bfloat16) * 0.05)(D, 3 * D)),
            "wo": _w((lambda *s: torch.randn(*s, dtype=torch.bfloat16) * 0.05)(D, D)),
        }
    _A_in = _A_setup()

    def _B_setup():
        B, S, D, F = 1, 2048, 512, 1792
        return {
            "x": _w((lambda *s: torch.randn(*s, dtype=torch.bfloat16) * 0.05)(B, S, D)),
            "w_gate": _w((lambda *s: torch.randn(*s, dtype=torch.bfloat16) * 0.8)(D, F) * (D ** -0.5)),
            "w_up": _w((lambda *s: torch.randn(*s, dtype=torch.bfloat16) * 0.8)(D, F) * (D ** -0.5)),
            "w_down": _w((lambda *s: torch.randn(*s, dtype=torch.bfloat16) * 0.8)(F, D) * (F ** -0.5)),
        }
    _B_in = _B_setup()

    return {
        "A_x": _A_in["x"],
        "A_wqkv": _A_in["wqkv"],
        "A_wo": _A_in["wo"],
        "B_x": _B_in["x"],
        "B_w_gate": _B_in["w_gate"],
        "B_w_up": _B_in["w_up"],
        "B_w_down": _B_in["w_down"],
    }

def reference(A_x, A_wqkv, A_wo, B_x, B_w_gate, B_w_up, B_w_down):
    def _A_ref(x, wqkv, wo):
        B, S, D = x.shape
        H = 32; Dh = D // H; W = 256
        qkv = (lambda x, *d: x.permute(*d))((x @ wqkv).reshape(B, S, 3, H, Dh), 2, 0, 3, 1, 4)
        q, k, v = qkv[0], qkv[1], qkv[2]
        scores = torch.einsum("bhqd,bhkd->bhqk", q, k) * (Dh ** -0.5)
        idx = torch.arange(S)
        mask = (idx[:, None] - idx[None, :] >= 0) & (idx[:, None] - idx[None, :] < W)
        scores = torch.where(mask[None, None], scores, -1e9)
        p = _softmax(scores, axis=-1)
        o = torch.einsum("bhqk,bhkd->bhqd", p, v)
        return (lambda x, *d: x.permute(*d))(o, 0, 2, 1, 3).reshape(B, S, D) @ wo

    def _B_ref(x, w_gate, w_up, w_down):
        g = torch.einsum("bsd,df->bsf", x, w_gate)
        u = torch.einsum("bsd,df->bsf", x, w_up)
        h = g * u
        return torch.einsum("bsf,fd->bsd", h, w_down)

    x = A_x
    h = x + _A_ref(_layernorm(x, axis=-1), A_wqkv, A_wo)
    h2 = h + _B_ref(_layernorm(h, axis=-1), B_w_gate, B_w_up, B_w_down)
    return h2
```

```python
import re

TRANS = ("v_exp_f32", "v_log_f32", "v_rcp_f32", "v_rsq_f32", "v_sqrt_f32", "v_sin_f32", "v_cos_f32")
REG_RE = re.compile(r"^-?\|?(v|a|s)(\d+)\|?$|^-?\|?(v|a|s)\[(\d+):(\d+)\]\|?$")


def regs_of(tok):
    tok = tok.strip()
    if tok.startswith("abs(") and tok.endswith(")"):
        tok = tok[4:-1]
    if tok == "vcc":
        return {("s", 106), ("s", 107)}
    if tok == "exec":
        return {("s", 126), ("s", 127)}
    if tok == "m0":
        return {("s", 124)}
    m = REG_RE.match(tok)
    if not m:
        return set()
    if m.group(1):
        return {(m.group(1), int(m.group(2)))}
    return {(m.group(3), i) for i in range(int(m.group(4)), int(m.group(5)) + 1)}


def split_ops(rest):
    out, depth, cur = [], 0, ""
    for ch in rest:
        if ch in "[(":
            depth += 1
        if ch in "])":
            depth -= 1
        if ch == "," and depth == 0:
            out.append(cur.strip())
            cur = ""
        else:
            cur += ch
    if cur.strip():
        out.append(cur.strip())
    ops, mods = [], ""
    for o in out:
        parts = o.split(None, 1)
        ops.append(parts[0])
        if len(parts) > 1:
            mods += " " + parts[1]
    return ops, mods


class Ins:
    def __init__(self, text):
        self.text = text
        parts = text.split(None, 1)
        self.op = parts[0]
        self.ops, self.mods = split_ops(parts[1]) if len(parts) > 1 else ([], "")
        op = self.op
        self.kind = "other"
        self.w, self.r = set(), set()
        self.srcc = set()
        self.ab = set()
        self.sdata = set()
        R = [regs_of(o) for o in self.ops]
        if op.startswith("v_mfma"):
            self.kind = "mfma"
            self.passes = 8 if "32x32x16" in op else 4 if "16x16x32" in op else 2 if "4x4x4" in op else 16
            self.w = R[0]
            self.ab = R[1] | R[2]
            self.srcc = R[3]
            self.r = self.ab | self.srcc
        elif op.startswith("v_"):
            self.kind = "valu"
            if op.startswith("v_permlane"):
                self.w = R[0] | R[1]
                self.r = R[0] | R[1]
            elif op.startswith("v_add_co") or op.startswith("v_addc_co") or op.startswith("v_sub_co"):
                self.w = R[0] | R[1]
                self.r = set().union(*R[2:])
            elif op == "v_nop":
                pass
            else:
                self.w = R[0]
                self.r = set().union(*R[1:]) if len(R) > 1 else set()
                if op.startswith("v_fmac") or op.startswith("v_dot2c") or "dpp" in op or op.startswith("v_writelane"):
                    self.r |= R[0]
        elif op.startswith("buffer_") or op.startswith("global_"):
            self.kind = "vmem"
            if op in ("buffer_wbl2", "buffer_inv"):
                pass
            elif "load" in op and (" lds" in self.mods + " " or "load_lds" in op):
                self.kind = "dma"
                self.r = set().union(*R) | {("s", 124)}
            elif "load" in op:
                self.w = R[0]
                self.r = set().union(*R[1:])
            elif op.startswith("buffer_"):
                self.r = set().union(*R)
                self.sdata = R[0] if ("x4" in op or "x3" in op) else set()
            else:
                self.r = set().union(*R)
                self.sdata = R[1] if ("x4" in op or "x3" in op) else set()
        elif op.startswith("ds_"):
            self.kind = "ds"
            if "read" in op or "permute" in op or "swizzle" in op:
                self.w = R[0]
                self.r = set().union(*R[1:])
            else:
                self.r = set().union(*R)
        elif op.startswith("s_"):
            self.kind = "salu"
            if op.startswith(("s_cmp", "s_cbranch", "s_branch", "s_waitcnt", "s_barrier", "s_nop", "s_endpgm", "s_sleep", "s_setprio", "s_bitcmp")):
                self.r = set().union(*R) if R else set()
            else:
                self.w = R[0] if R else set()
                self.r = set().union(*R[1:]) if len(R) > 1 else set()
                if "saveexec" in op:
                    self.w = self.w | {("s", 126), ("s", 127)}

    def states(self):
        if self.op == "s_nop":
            return int(self.ops[0], 0) + 1
        return 1


def is_vec(x):
    return x[0] in ("v", "a")


def need(p, c):
    n = 0
    pv = {x for x in p.w if is_vec(x)}
    ps = {x for x in p.w if x[0] == "s"}
    if p.kind == "valu":
        if c.kind == "mfma" and pv & c.r:
            n = max(n, 2)
        if c.kind == "valu":
            if p.op.replace("_e32", "").replace("_e64", "") in TRANS and pv & c.r:
                n = max(n, 1)
            if c.op.startswith("v_permlane") and pv & c.r:
                n = max(n, 2)
            if "dpp" in c.op and pv & c.r:
                n = max(n, 2)
            if c.op.startswith(("v_readfirstlane", "v_readlane")) and pv & c.r:
                n = max(n, 1)
            if ps & c.r:
                n = max(n, 4 if c.op.startswith(("v_readlane", "v_writelane")) else 2)
        if c.kind in ("vmem", "dma") and ps & c.r:
            n = max(n, 5)
        if c.kind == "salu" and ps and (ps & c.r or (c.op.startswith("s_cbranch_vcc") and ("s", 106) in ps)):
            n = max(n, 2)
    if p.kind == "mfma":
        full = {2: 5, 4: 8, 8: 12, 16: 20}[p.passes]
        if c.kind == "mfma":
            if pv & c.ab:
                n = max(n, full)
            if pv & c.srcc:
                if c.srcc == pv and c.passes == p.passes:
                    n = max(n, 2 if p.passes == 2 else 0)
                else:
                    n = max(n, {2: 4, 4: 6, 8: 10, 16: 18}[p.passes])
            elif pv & c.w:
                n = max(n, 0 if (c.w == pv and c.passes == p.passes) else full)
        elif c.kind in ("valu", "vmem", "ds", "dma"):
            if pv & (c.r | c.w):
                n = max(n, full)
            if c.kind == "valu" and p.srcc & c.w:
                n = max(n, {2: 1, 4: 3, 8: 7, 16: 15}[p.passes])
    if p.kind == "salu" and ("s", 124) in p.w and c.kind == "dma":
        n = max(n, 1)
    if p.sdata and p.sdata & c.w:
        n = max(n, 2 if c.kind == "valu" else 1)
    return n


class Asm:
    def __init__(self):
        self.lines = []
        self.vm_issued = 0
        self.vm_done = 0
        self.lg_issued = 0
        self.lg_done = 0
        self.smem_out = False

    def raw(self, text):
        self.lines.append(text)

    def label(self, name):
        self.lines.append(name + ":")

    def comment(self, text):
        self.lines.append("; " + text)

    def __call__(self, text):
        tok = None
        for t in text.strip().split("\n"):
            t = t.strip()
            if not t:
                continue
            self.lines.append(t)
            op = t.split()[0]
            if op.startswith(("buffer_", "global_")):
                self.vm_issued += 1
                tok = ("vm", self.vm_issued)
            elif op.startswith("ds_"):
                self.lg_issued += 1
                tok = ("lg", self.lg_issued)
            elif op.startswith(("s_load", "s_memtime", "s_memrealtime", "s_buffer_load")):
                self.smem_out = True
                tok = ("sm", 0)
            elif op == "s_waitcnt":
                m = re.search(r"vmcnt\((\d+)\)", t)
                if m:
                    self.vm_done = max(self.vm_done, self.vm_issued - int(m.group(1)))
                m = re.search(r"lgkmcnt\((\d+)\)", t)
                if m:
                    if int(m.group(1)) == 0:
                        self.smem_out = False
                    if not self.smem_out:
                        self.lg_done = max(self.lg_done, self.lg_issued - int(m.group(1)))
        return tok

    def wait(self, *toks):
        vm = lg = None
        for t in toks:
            if t is None:
                continue
            if t[0] == "vm" and t[1] > self.vm_done:
                n = min(self.vm_issued - t[1], 63)
                vm = n if vm is None else min(vm, n)
            elif t[0] == "lg" and t[1] > self.lg_done:
                n = 0 if self.smem_out else min(self.lg_issued - t[1], 15)
                lg = n if lg is None else min(lg, n)
            elif t[0] == "sm" and self.smem_out:
                lg = 0
        s = ""
        if vm is not None:
            s += f" vmcnt({vm})"
        if lg is not None:
            s += f" lgkmcnt({lg})"
        if s:
            self("s_waitcnt" + s)

    def covered(self, tok):
        return tok[1] <= (self.vm_done if tok[0] == "vm" else self.lg_done)

    def finish(self, verbose=False):
        out, hist, pad = [], [], 0
        for ln in self.lines:
            s = ln.strip()
            if not s or s.startswith((";", ".")) or s.endswith(":"):
                out.append(ln)
                continue
            ins = Ins(s.split(";")[0].strip())
            dist, req = 0, 0
            for p in reversed(hist):
                req = max(req, need(p, ins) - dist)
                dist += p.states()
                if dist >= 20:
                    break
            while req > 0:
                k = min(req, 16)
                nop = Ins(f"s_nop {k - 1}")
                out.append("    " + nop.text)
                hist.append(nop)
                if verbose:
                    print(f"pad {k} before: {s}")
                pad += k
                req -= k
            out.append("    " + s)
            hist.append(ins)
            hist = hist[-24:]
        self.pad_states = pad
        return "\n".join(out)
```

```python
import sys
from asmlib import Asm

NAME = "sequential_preLN__sliding_block__glu_gated_bilinear__prompt"

WS_E, WS_TAB, WS_KVF, WS_OF, WS_HF, WS_HHF = 0x0, 0x400, 0x1000, 0x2000, 0x3000, 0x5000
WS_ST, WS_KV, WS_O, WS_H, WS_HH, WS_DBG = 0x10000, 0x100000, 0x500000, 0x700000, 0x900000, 0x1000000
WS_SIZE = 0x1000000
TAG_STEP = 0x9E3779B0
SLOT = 16384
XB = 5 * SLOT
XROW = 1040
RED = 9 * SLOT
ONES = 0x3F803F80
NEG = 0xFF800000
SPIN_MAX = 1 << 18

sW, sG, sC, sTB, sHQ, sB, sTAG, sFAST, sTT, sHP = 3, 4, 5, 6, 7, 8, 9, 10, 11, 12
sW4K, sENT, sT = 13, 14, 15
sPAR, sTA, sTBB, sE = 16, 17, 18, 19
X, WQ, WO, WGU, WD, OUT, WS = "s[24:27]", "s[28:31]", "s[32:35]", "s[36:39]", "s[40:43]", "s[44:47]", "s[48:51]"
vL, vO16 = 0, 1
vD3072, vD3584, vD1024 = 2, 6, 10
vXA, vWA = 14, 15
vGU = 17
vDN = 25
vST = 31
vH = 32
vTAG, vJ = 48, 49
vT = 50


def v(a, n=1):
    return f"v{a}" if n == 1 else f"v[{a}:{a + n - 1}]"


def a_(a, n=1):
    return f"a{a}" if n == 1 else f"a[{a}:{a + n - 1}]"


def s(a, n=1):
    return f"s{a}" if n == 1 else f"s[{a}:{a + n - 1}]"


MF32 = "v_mfma_f32_32x32x16_bf16"
MF16 = "v_mfma_f32_16x16x32_bf16"


class Gen:
    def __init__(self, stamps=False, stop=None, listform=False, force_slow=False, force_fb=False, opt=None):
        self.A = Asm()
        self.stamps, self.stop, self.listform = stamps, stop, listform
        self.force_slow, self.force_fb = force_slow, force_fb
        self.opt = opt or {}
        self.nlab = 0
        self.stamp_names = []

    def lab(self, p):
        self.nlab += 1
        return f"L_{p}{self.nlab}"

    def stamp(self, name):
        if not self.stamps:
            return
        i = len(self.stamp_names)
        self.stamp_names.append(name)
        self.A(f"s_memtime s[78:79]\ns_waitcnt lgkmcnt(0)\nv_writelane_b32 {v(vST)}, s78, {i}")

    def dma4(self, vbase, srd, soff, slot):
        A = self.A
        A(f"s_add_u32 m0, {s(sW4K)}, {slot * SLOT}")
        return [f"buffer_load_dwordx4 {v(vbase + i)}, {srd}, {soff} offen offset:{i * 1024} lds" for i in range(4)]

    def publish(self, toks, soff):
        A = self.A
        lf, ld = self.lab("pf"), self.lab("pd")
        A.wait(*toks)
        A(f"s_cmp_lg_u32 {s(sFAST)}, 0\ns_cbranch_scc1 {lf}")
        A.raw("buffer_wbl2 sc1")
        A.raw("s_waitcnt vmcnt(0)")
        A.raw(f"buffer_store_dword {v(vTAG)}, off, {WS}, {soff} sc1")
        A(f"s_branch {ld}")
        A.label(lf)
        A(f"buffer_store_dword {v(vTAG)}, off, {WS}, {soff}")
        A.label(ld)

    def poll(self, vaddr, acquire=True):
        A = self.A
        lp, ld = self.lab("poll"), self.lab("pollx")
        A("s_mov_b32 s60, 0")
        A.label(lp)
        A(f"buffer_load_dword {v(vT)}, {v(vaddr)}, {WS}, 0 offen sc1")
        A(f"s_add_u32 s60, s60, 1\ns_cmp_gt_u32 s60, {SPIN_MAX}\ns_waitcnt vmcnt(0)\ns_cbranch_scc1 {ld}")
        A(f"v_xor_b32 {v(vT + 1)}, {v(vT)}, {v(vTAG)}\nv_cmp_lt_u32 vcc, 15, {v(vT + 1)}\ns_cbranch_vccnz {lp}")
        A.label(ld)
        if acquire:
            self.acquire()

    def acquire(self):
        A = self.A
        lf = self.lab("aq")
        A(f"s_cmp_lg_u32 {s(sFAST)}, 0\ns_cbranch_scc1 {lf}")
        A.raw("buffer_inv sc1")
        A.raw("s_waitcnt vmcnt(0)")
        A.label(lf)

    def finish_kernel(self):
        A = self.A
        if self.stamps:
            A("s_memrealtime s[78:79]\ns_waitcnt lgkmcnt(0)")
            A(f"v_writelane_b32 {v(vST)}, s78, 63\nv_writelane_b32 {v(vST)}, s76, 62\nv_writelane_b32 {v(vST)}, {s(sFAST)}, 61")
            A(f"s_lshl_b32 s60, s2, 2\ns_add_u32 s60, s60, {s(sW)}\ns_lshl_b32 s60, s60, 8\ns_add_u32 s60, s60, {WS_DBG}")
            A(f"v_lshlrev_b32 {v(vT)}, 2, {v(vL)}")
            A(f"buffer_store_dword {v(vST)}, {v(vT)}, {WS}, s60 offen sc1")
        A("s_endpgm")

    def prologue(self):
        A = self.A
        A("s_cmp_ge_u32 s2, 256\ns_cbranch_scc1 L_exit")
        A(f"s_load_dwordx2 s[24:25], s[0:1], 0\ns_load_dwordx2 s[28:29], s[0:1], 8\ns_load_dwordx2 s[48:49], s[0:1], 72")
        A(f"s_load_dwordx2 s[32:33], s[0:1], 16\ns_load_dwordx4 s[52:55], s[0:1], 32\ns_load_dwordx4 s[56:59], s[0:1], 48")
        if self.stamps:
            A("s_memrealtime s[76:77]")
            A(f"v_mov_b32 {v(vST)}, 0")
        A(f"v_lshrrev_b32 {v(vT)}, 6, v0\nv_and_b32 {v(vL)}, 63, v0")
        A(f"s_and_b32 {s(sG)}, s2, 7\ns_lshr_b32 {s(sC)}, s2, 3")
        A(f"v_readfirstlane_b32 {s(sW)}, {v(vT)}")
        A(f"s_getpc_b64 s[60:61]\ns_lshl_b32 s62, {s(sC)}, 10\nv_and_b32 {v(vT + 1)}, 7, {v(vL)}\nv_lshlrev_b32 {v(vT + 1)}, 7, {v(vT + 1)}")
        A(f"v_add_u32 {v(vT + 1)}, s62, {v(vT + 1)}")
        A(f"global_load_dword {v(vJ)}, {v(vT + 1)}, s[60:61]")
        A(f"s_and_b32 {s(sTB)}, {s(sC)}, 3\ns_lshr_b32 {s(sHQ)}, {s(sC)}, 2")
        A(f"s_lshl_b32 {s(sB)}, {s(sG)}, 2\ns_add_u32 {s(sB)}, {s(sB)}, {s(sTB)}")
        A(f"s_and_b32 {s(sTT)}, {s(sW)}, 1\ns_lshr_b32 {s(sHP)}, {s(sW)}, 1\ns_lshl_b32 {s(sW4K)}, {s(sW)}, 12")
        A(f"s_lshl_b32 {s(sT)}, {s(sB)}, 1\ns_add_u32 {s(sT)}, {s(sT)}, {s(sTT)}")
        for srd, size in ((24, 2048 * 1024), (28, 512 * 3072), (32, 512 * 1024), (40, 1792 * 1024), (44, 2048 * 1024),
                          (48, WS_SIZE + (0x100000 if self.stamps else 0))):
            A(f"s_mov_b32 s{srd + 2}, {size}\ns_mov_b32 s{srd + 3}, 0x20000")
        A("s_mov_b32 s39, 0x20000")
        A(f"v_lshlrev_b32 {v(vO16)}, 4, {v(vL)}")
        t0, t1, t2, t3 = vT, vT + 1, vT + 2, vT + 3
        A(f"v_lshrrev_b32 {v(t0)}, 3, {v(vL)}\nv_and_b32 {v(t1)}, 7, {v(vL)}")
        A(f"v_lshlrev_b32 {v(t2)}, 10, {v(t0)}\nv_lshl_add_u32 {v(vT + 4)}, {v(t1)}, 4, {v(t2)}\nv_add_u32 {v(vT + 5)}, 8192, {v(vT + 4)}")
        A(f"s_lshl_b32 s62, {s(sB)}, 16\ns_lshl_b32 s63, {s(sW)}, 14\ns_add_u32 s62, s62, s63")
        A(f"v_lshrrev_b32 {v(t2)}, 2, {v(vL)}\nv_and_b32 {v(t2)}, 4, {v(t2)}\nv_xor_b32 {v(t2)}, {v(t2)}, {v(t1)}\nv_lshlrev_b32 {v(t2)}, 4, {v(t2)}")
        A(f"v_mul_u32_u24 {v(t3)}, 3072, {v(t0)}\nv_add_u32 {v(vD3072)}, {v(t3)}, {v(t2)}")
        for i in range(1, 4):
            A(f"v_add_u32 {v(vD3072 + i)}, {i * (8 * 3072 - 1024)}, {v(vD3072)}")
        A("s_waitcnt lgkmcnt(0)")
        A(f"s_load_dword {s(sTAG)}, s[48:49], {WS_E}")
        self.xtok = []
        for i in range(16):
            b = 64 + 8 * i
            self.xtok.append(A(f"buffer_load_dwordx4 {v(b + 4, 4)}, {v(vT + 4 + (i & 1))}, {X}, s62 offen offset:{(i >> 1) * 128}"))
        A(f"s_mul_i32 s64, {s(sTT)}, {32 * 3072}\ns_lshl_b32 s63, {s(sHP)}, 10\ns_add_u32 s64, s64, s63")
        A(f"s_lshl_b32 s63, {s(sHQ)}, 7\ns_add_u32 s64, s64, s63\ns_add_u32 s64, s64, 1024")
        A(f"s_mul_i32 s65, {s(sW)}, {32 * 3072}\ns_add_u32 s65, s65, s63")
        self.dtok = {}
        for n in range(5):
            self.s1_dma(n)
        A(f"s_mov_b32 s40, s56\ns_mov_b32 s41, s57\ns_mov_b32 s44, s58\ns_mov_b32 s45, s59")
        A(f"s_cmp_eq_u32 {s(sHP)}, 0\ns_cselect_b32 s36, s52, s54\ns_cselect_b32 s37, s53, s55")
        A(f"s_cmp_lt_u32 {s(sC)}, 28\ns_cselect_b32 s38, {512 * 3584}, 0")
        A(f"v_lshlrev_b32 {v(t3)}, 10, {v(t0)}\nv_add_u32 {v(vD1024)}, {v(t3)}, {v(t2)}")
        for i in range(1, 4):
            A(f"v_add_u32 {v(vD1024 + i)}, {i * (8 * 1024 - 1024)}, {v(vD1024)}")
        A(f"s_lshl_b32 s63, {s(sHP)}, 5\nv_xor_b32 {v(t2)}, s63, {v(t2)}")
        A(f"v_mul_u32_u24 {v(t3)}, 3584, {v(t0)}\nv_add_u32 {v(vD3584)}, {v(t3)}, {v(t2)}")
        for i in range(1, 4):
            A(f"v_add_u32 {v(vD3584 + i)}, {i * (8 * 3584 - 1024)}, {v(vD3584)}")
        A(f"s_mul_i32 s63, {s(sW)}, {16 * XROW}\ns_add_u32 s63, s63, {XB}")
        A(f"v_mul_u32_u24 {v(t3)}, {XROW}, {v(t0)}\nv_lshl_add_u32 {v(t3)}, {v(t1)}, 4, {v(t3)}\nv_add_u32 {v(vT + 6)}, s63, {v(t3)}")
        A(f"v_and_b32 {v(t0)}, 31, {v(vL)}\nv_lshrrev_b32 {v(t1)}, 5, {v(vL)}")
        A(f"s_mul_i32 s63, {s(sTT)}, {32 * XROW}\ns_add_u32 s63, s63, {XB}")
        A(f"v_mul_u32_u24 {v(t3)}, {XROW}, {v(t0)}\nv_lshl_add_u32 {v(t3)}, {v(t1)}, 4, {v(t3)}\nv_add_u32 {v(vXA)}, s63, {v(t3)}")
        r_, pc = vT + 7, vT + 8
        A(f"v_bfe_u32 {v(r_)}, {v(vL)}, 2, 2")
        A(f"v_and_b32 {v(t0)}, 3, {v(vL)}\nv_lshlrev_b32 {v(pc)}, 3, {v(t0)}")
        A(f"v_and_b32 {v(t0)}, 8, {v(vL)}\nv_lshl_add_u32 {v(pc)}, {v(t0)}, 3, {v(pc)}")
        A(f"v_and_b32 {v(t0)}, 16, {v(vL)}\nv_lshl_add_u32 {v(pc)}, {v(t0)}, 1, {v(pc)}")
        A(f"s_lshl_b32 s63, {s(sHP)}, 6\nv_xor_b32 {v(t2)}, s63, {v(pc)}")
        A(f"v_lshl_add_u32 {v(t3)}, {v(t1)}, 3, {v(r_)}\nv_lshl_add_u32 {v(vWA)}, {v(t3)}, 7, {v(t2)}")
        A(f"v_add_u32 {v(vWA + 1)}, 0x10000, {v(vWA)}")
        A(f"v_lshl_add_u32 {v(t3)}, {v(t1)}, 2, {v(r_)}\nv_lshlrev_b32 {v(t3)}, 7, {v(t3)}")
        A(f"s_lshl_b32 s63, {s(sHP)}, 13\nv_add3_u32 {v(vDN)}, {v(t3)}, {v(t2)}, s63\nv_xor_b32 {v(vDN + 1)}, 64, {v(vDN)}")
        for k in (1, 2):
            A(f"v_add_u32 {v(vDN + 2 * k)}, {k * 0x10000}, {v(vDN)}\nv_add_u32 {v(vDN + 2 * k + 1)}, {k * 0x10000}, {v(vDN + 1)}")
        A(f"v_lshl_add_u32 {v(t3)}, {v(t0)}, 9, {v(t3)}")
        for cp in range(4):
            A(f"s_xor_b32 s63, {s(sW)}, {cp}\ns_lshl_b32 s63, s63, 5\nv_xor_b32 {v(t2)}, s63, {v(pc)}")
            A(f"v_add_u32 {v(vGU + cp)}, {v(t3)}, {v(t2)}\nv_add_u32 {v(vGU + 4 + cp)}, 0x10000, {v(vGU + cp)}")
        for j in range(10):
            if j < 8 and j % 2 == 0:
                A(f"s_cmp_ge_u32 {s(sB)}, {4 - j // 2}\ns_cselect_b32 s63, {ONES}, 0\nv_mov_b32 {v(t0)}, s63")
            if j == 8:
                A(f"v_mov_b32 {v(t0)}, {ONES}")
            for k in range(8):
                A(f"v_accvgpr_write_b32 {a_(128 + 12 * j + 4 + k)}, {v(t0)}")
        lz = self.lab("kz")
        A(f"s_cmp_lg_u32 {s(sG)}, 0\ns_cbranch_scc1 {lz}")
        for j in range(8):
            for k in range(4):
                A(f"v_accvgpr_write_b32 {a_(128 + 12 * j + k)}, 0")
        A.label(lz)
        self.stamp("issued")

    def s1_dma(self, n):
        A = self.A
        if n < 8:
            A(f"s_lshl_b32 s63, {s(sTB)}, 1\ns_add_u32 s63, s63, {n}\ns_and_b32 s63, s63, 7\ns_mul_i32 s63, s63, {64 * 3072}\ns_add_u32 s63, s63, s64")
        else:
            A(f"s_add_u32 s63, {s(sTB)}, {n - 8}\ns_and_b32 s63, s63, 3\ns_mul_i32 s63, s63, {128 * 3072}\ns_add_u32 s63, s63, s65")
        for t in self.dma4(vD3072, WQ, "s63", n % 5):
            self.dtok[n] = A(t)

    def ln1(self):
        A = self.A
        acc = 192
        for k in range(8):
            A(f"v_mov_b32 {v(acc + k)}, 0")
        A("s_mov_b32 s66, 0xffff0000")
        for i in range(16):
            b = 64 + 8 * i
            su, sq = acc + 4 * (i & 1), acc + 4 * (i & 1) + 2
            A.wait(self.xtok[i])
            if i == 0:
                self.stamp("x0")
            for d in range(4):
                A(f"v_lshlrev_b32 {v(b + 2 * d)}, 16, {v(b + 4 + d)}\nv_and_b32 {v(b + 2 * d + 1)}, s66, {v(b + 4 + d)}")
                A(f"v_pk_add_f32 {v(su, 2)}, {v(su, 2)}, {v(b + 2 * d, 2)}")
                A(f"v_pk_fma_f32 {v(sq, 2)}, {v(b + 2 * d, 2)}, {v(b + 2 * d, 2)}, {v(sq, 2)}")
        self.stamp("xall")
        for k in range(4):
            A(f"v_add_f32 {v(acc + 2 * k)}, {v(acc + 2 * k)}, {v(acc + 2 * k + 1)}")
        for pat in ("quad_perm:[1,0,3,2]", "quad_perm:[2,3,0,1]", "row_half_mirror"):
            for k in range(4):
                A(f"v_add_f32_dpp {v(acc + 2 * k)}, {v(acc + 2 * k)}, {v(acc + 2 * k)} {pat} row_mask:0xf bank_mask:0xf")
        A("s_mov_b32 s67, 0x3b000000\ns_mov_b32 s68, 0x3727c5ac")
        for k in (0, 4):
            A(f"v_mul_f32 {v(acc + k)}, s67, {v(acc + k)}\nv_mul_f32 {v(acc + k + 2)}, s67, {v(acc + k + 2)}")
        for k in (0, 4):
            A(f"v_fma_f32 {v(acc + k + 2)}, -{v(acc + k)}, {v(acc + k)}, {v(acc + k + 2)}")
        for k in (0, 4):
            A(f"v_max_f32 {v(acc + k + 2)}, 0, {v(acc + k + 2)}\nv_add_f32 {v(acc + k + 2)}, s68, {v(acc + k + 2)}")
        for k in (0, 4):
            A(f"v_rsq_f32 {v(acc + k + 2)}, {v(acc + k + 2)}")
        for k in (0, 4):
            A(f"v_mul_f32 {v(acc + k)}, -{v(acc + k)}, {v(acc + k + 2)}")
        A("s_waitcnt lgkmcnt(0)")
        A(f"s_add_u32 {s(sTAG)}, {s(sTAG)}, {TAG_STEP}\ns_and_b32 {s(sTAG)}, {s(sTAG)}, 0xfffffff0")
        A(f"s_getreg_b32 {s(sENT)}, hwreg(HW_REG_XCC_ID)\ns_and_b32 {s(sENT)}, {s(sENT)}, 15\ns_or_b32 {s(sENT)}, {s(sENT)}, {s(sTAG)}")
        A(f"v_mov_b32 {v(vTAG)}, {s(sTAG)}")
        for i in range(16):
            b = 64 + 8 * i
            nb, rs = acc + 4 * (i & 1), acc + 4 * (i & 1) + 2
            for d in range(4):
                A(f"v_pk_fma_f32 {v(b + 2 * d, 2)}, {v(b + 2 * d, 2)}, {v(rs, 2)}, {v(nb, 2)} op_sel_hi:[1,0,0]")
            for d in range(4):
                A(f"v_cvt_pk_bf16_f32 {v(b + d)}, {v(b + 2 * d)}, {v(b + 2 * d + 1)}")
            A(f"ds_write_b128 {v(vT + 6)}, {v(b, 4)} offset:{(i & 1) * 8 * XROW + (i >> 1) * 128}")
        self.stamp("ln1")

    def s1_reads(self, n):
        slot = n % 5
        wa, base = (vWA, slot * SLOT) if slot < 4 else (vWA + 1, slot * SLOT - 0x10000)
        wf = 64 + 32 * (n & 1)
        steps = []
        if n < 8:
            for ks in range(4):
                L = [f"ds_read_b128 {a_(16 * n + 4 * ks, 4)}, {v(vT + 9)} offset:{ks * 32}"]
                for part in range(2):
                    for j in range(2):
                        L.append(f"ds_read_b64_tr_b16 {v(wf + 8 * ks + 4 * part + 2 * j, 2)}, {v(wa)} offset:{base + part * 8192 + ks * 2048 + j * 512}")
                steps.append(L)
        else:
            for ks in range(8):
                steps.append([f"ds_read_b64_tr_b16 {v(wf + 4 * ks + 2 * j, 2)}, {v(wa)} offset:{base + ks * 2048 + j * 512}" for j in range(2)])
        return steps

    def s1_xaddr(self, n):
        A = self.A
        A(f"s_lshl_b32 s63, {s(sTB)}, 1\ns_add_u32 s63, s63, {n}\ns_and_b32 s63, s63, 7\ns_lshl_b32 s63, s63, 7")
        A(f"v_add_u32 {v(vT + 9)}, s63, {v(vXA)}")

    def s1_mfmas(self, n):
        wf = 64 + 32 * (n & 1)
        aK, aV, aQ = 224, 240, 208
        out = []
        if n < 8:
            for ks in range(4):
                first = n == 0 and ks == 0
                xf = a_(16 * n + 4 * ks, 4)
                out.append(f"{MF32} {v(aK, 16)}, {v(wf + 8 * ks, 4)}, {xf}, {'0' if first else v(aK, 16)}")
                out.append(f"{MF32} {v(aV, 16)}, {xf}, {v(wf + 8 * ks + 4, 4)}, {'0' if first else v(aV, 16)}")
        else:
            for ks in range(8):
                first = n == 8 and ks == 0
                out.append(f"{MF32} {v(aQ, 16)}, {v(wf + 4 * ks, 4)}, {a_(32 * (n - 8) + 4 * ks, 4)}, {'0' if first else v(aQ, 16)}")
        return out

    def interleave(self, mf, fill):
        A = self.A
        k = 0
        for i, m in enumerate(mf):
            A(m)
            upto = (len(fill) * (i + 1) + len(mf) - 1) // len(mf)
            while k < upto:
                A(fill[k])
                k += 1

    def qkv(self):
        A = self.A
        aK, aV, aQ = 224, 240, 208
        self.s1_xaddr(0)
        A.wait(self.dtok[0])
        A("s_waitcnt lgkmcnt(0)\ns_barrier")
        A(f"s_lshl_b32 s63, {s(sG)}, 5\ns_add_u32 s63, s63, {s(sC)}\ns_lshl_b32 s63, s63, 2\ns_add_u32 s69, s63, {WS_TAB}")
        A(f"v_mov_b32 {v(vT)}, {s(sENT)}")
        A(f"buffer_store_dword {v(vT)}, off, {WS}, s69 sc1")
        for st in self.s1_reads(0):
            for t in st:
                A(t)
        for n in range(7):
            self.s1_xaddr(n + 1)
            A.wait(self.dtok[n + 1])
            A("s_waitcnt lgkmcnt(0)\ns_barrier")
            self.s1_dma(n + 5)
            self.interleave(self.s1_mfmas(n), sum(self.s1_reads(n + 1), []))
        A("s_waitcnt lgkmcnt(0)")
        fill = [
            f"s_lshl_b32 s63, {s(sHQ)}, 1", f"s_add_u32 s63, s63, {s(sHP)}", "s_lshl_b32 s70, s63, 18",
            f"s_lshl_b32 s71, {s(sT)}, 11", "s_add_u32 s70, s70, s71", f"s_add_u32 s70, s70, {WS_KV}", "s_add_u32 s71, s70, 0x20000",
            "s_lshl_b32 s72, s63, 8", f"s_lshl_b32 s63, {s(sT)}, 2", "s_add_u32 s72, s72, s63", f"s_add_u32 s72, s72, {WS_KVF}",
            f"v_and_b32 {v(vT)}, 15, {v(vL)}", f"v_lshrrev_b32 {v(vT + 1)}, 5, {v(vL)}", f"v_lshlrev_b32 {v(vT)}, 4, {v(vT)}",
            f"v_lshl_add_u32 {v(vT + 10)}, {v(vT + 1)}, 8, {v(vT)}",
            f"v_and_b32 {v(vT)}, 16, {v(vL)}", f"v_lshl_add_u32 {v(vT + 2)}, {v(vT)}, 13, {v(vT + 10)}",
            f"v_lshl_add_u32 {v(vT + 3)}, {v(vT)}, 8, {v(vT + 10)}",
            f"s_lshl_b32 s63, {s(sHP)}, 13", f"s_lshl_b32 s73, {s(sTT)}, 11", "s_add_u32 s63, s63, s73", f"s_add_u32 s63, s63, {XB}",
            f"v_add_u32 {v(vT + 3)}, s63, {v(vT + 3)}", f"v_add_u32 {v(vT + 4)}, s63, {v(vO16)}",
        ]
        self.interleave(self.s1_mfmas(7), fill)
        pk = 128
        for k in range(8):
            A(f"v_cvt_pk_bf16_f32 {v(pk + k)}, {v(aK + 2 * k)}, {v(aK + 2 * k + 1)}")
        A(f"buffer_store_dwordx4 {v(pk, 4)}, {v(vO16)}, {WS}, s70 offen sc1")
        A(f"buffer_store_dwordx4 {v(pk + 4, 4)}, {v(vO16)}, {WS}, s71 offen sc1")
        for k in range(8):
            A(f"v_cvt_pk_bf16_f32 {v(pk + 8 + k)}, {v(aV + 2 * k)}, {v(aV + 2 * k + 1)}")
        A(f"buffer_store_dwordx4 {v(pk + 8, 4)}, {v(vT + 2)}, {WS}, s70 offen offset:1024 sc1")
        kvtok = A(f"buffer_store_dwordx4 {v(pk + 12, 4)}, {v(vT + 2)}, {WS}, s70 offen offset:1536 sc1")
        self.stamp("kvst")
        A.wait(self.dtok[8])
        A("s_barrier")
        for st in self.s1_reads(8):
            for t in st:
                A(t)
        A(f"ds_write_b128 {v(vT + 4)}, {v(pk, 4)}\nds_write_b128 {v(vT + 4)}, {v(pk + 4, 4)} offset:4096")
        A(f"ds_write_b128 {v(vT + 3)}, {v(pk + 8, 4)} offset:1024\nds_write_b128 {v(vT + 3)}, {v(pk + 12, 4)} offset:1536")
        for n in range(8, 11):
            A.wait(self.dtok[n + 1])
            A("s_waitcnt lgkmcnt(0)\ns_barrier")
            self.interleave(self.s1_mfmas(n), sum(self.s1_reads(n + 1), []))
        A("s_waitcnt lgkmcnt(0)")
        for m in self.s1_mfmas(11):
            A(m)
        A.wait(kvtok)
        A(f"buffer_store_dword {v(vTAG)}, off, {WS}, s72 sc1")
        self.stamp("kvflag")
        A(f"s_mov_b32 s63, 0x3eb8aa3b\ns_lshl_b32 s73, {s(sHP)}, 12\ns_lshl_b32 s74, {s(sTT)}, 10\ns_add_u32 s73, s73, s74\ns_add_u32 s73, s73, {XB + 16384}")
        A(f"v_add_u32 {v(vT + 4)}, s73, {v(vO16)}")
        for k in range(16):
            A(f"v_mul_f32 {v(aQ + k)}, s63, {v(aQ + k)}")
        for k in range(8):
            A(f"v_cvt_pk_bf16_f32 {v(pk + k)}, {v(aQ + 2 * k)}, {v(aQ + 2 * k + 1)}")
        A(f"ds_write_b128 {v(vT + 4)}, {v(pk, 4)}\nds_write_b128 {v(vT + 4)}, {v(pk + 4, 4)} offset:2048")
        A(f"v_add_u32 {v(vT + 3)}, {s(sW4K)}, {v(vO16)}\nv_add_u32 {v(vT + 4)}, {s(sW4K)}, {v(vT + 10)}")
        A(f"s_lshl_b32 s63, {s(sW)}, 11\nv_add_u32 {v(vT + 5)}, s63, {v(vO16)}")
        A(f"v_add_u32 {v(vT + 3)}, {XB}, {v(vT + 3)}\nv_add_u32 {v(vT + 4)}, {XB}, {v(vT + 4)}\nv_add_u32 {v(vT + 5)}, {XB + 16384}, {v(vT + 5)}")
        A("s_waitcnt lgkmcnt(0)\ns_barrier")
        A(f"ds_read_b128 {a_(248, 4)}, {v(vT + 5)}\nds_read_b128 {a_(252, 4)}, {v(vT + 5)} offset:1024")
        for t in range(2):
            A(f"ds_read_b128 {a_(128 + 12 * (8 + t), 4)}, {v(vT + 3)} offset:{t * 2048}")
        A("s_mov_b32 exec_lo, 0xffff\ns_mov_b32 exec_hi, 0xffff")
        for t in range(2):
            for k in range(2):
                A(f"ds_read_b128 {a_(128 + 12 * (8 + t) + 4 + 4 * k, 4)}, {v(vT + 4)} offset:{t * 2048 + 1024 + k * 512}")
        A("s_mov_b64 exec, -1")
        self.stamp("q")

    def attention(self):
        A = self.A
        mD, mF, S0, P, O0 = 64, 80, 96, 128, 144
        A(f"v_and_b32 {v(vT)}, 31, {v(vL)}\nv_lshrrev_b32 {v(vT + 1)}, 5, {v(vL)}\nv_lshlrev_b32 {v(vT + 1)}, 2, {v(vT + 1)}")
        A(f"v_sub_u32 {v(vT)}, {v(vT)}, {v(vT + 1)}\ns_mov_b32 s63, {NEG}")
        for r in range(16):
            kr = 8 * (r >> 2) + (r & 3)
            A(f"v_subrev_u32 {v(mD + r)}, {kr}, {v(vT)}\nv_ashrrev_i32 {v(mD + r)}, 31, {v(mD + r)}")
            A(f"v_and_b32 {v(mD + r)}, s63, {v(mD + r)}\nv_xor_b32 {v(mF + r)}, s63, {v(mD + r)}")
        A(f"s_lshl_b32 s63, {s(sHQ)}, 1\ns_add_u32 s63, s63, {s(sHP)}\ns_lshl_b32 s63, s63, 8\ns_add_u32 s63, s63, {WS_KVF}")
        A(f"s_lshl_b32 s73, {s(sB)}, 1\ns_sub_u32 s73, s73, 8\nv_add_u32 {v(vT + 1)}, s73, {v(vL)}")
        A(f"v_lshlrev_b32 {v(vT + 2)}, 2, {v(vT + 1)}\nv_add_u32 {v(vT + 2)}, s63, {v(vT + 2)}")
        A(f"s_lshl_b32 s63, {s(sG)}, 7\ns_add_u32 s63, s63, {WS_TAB}\nv_and_b32 {v(vT + 3)}, 31, {v(vL)}")
        A(f"v_lshlrev_b32 {v(vT + 3)}, 2, {v(vT + 3)}\nv_add_u32 {v(vT + 3)}, s63, {v(vT + 3)}")
        A(f"v_cmp_gt_u32 vcc, 8, {v(vL)}\nv_cmp_le_i32 s[74:75], 0, {v(vT + 1)}\ns_and_b64 vcc, vcc, s[74:75]")
        A(f"v_cndmask_b32 {v(vT + 11)}, {v(vT + 3)}, {v(vT + 2)}, vcc")
        A("s_waitcnt lgkmcnt(0)\ns_barrier")

        tiles = [(0, 8, "d"), (1, 8, ""), (1, 9, "d"), (0, 0, "f"), (0, 1, ""), (1, 1, "f")]
        for j in range(2, 8):
            tiles += [(0, j, ""), (1, j, "")]
        started = [False, False]

        def s_mfma(n):
            q, j, m = tiles[n]
            c = {"": "0", "d": v(mD, 16), "f": v(mF, 16)}[m]
            return f"{MF32} {v(S0 + 16 * (n & 1), 16)}, {a_(128 + 12 * j, 4)}, {a_(248 + 4 * q, 4)}, {c}"

        def body(n, fill):
            q, j, m = tiles[n]
            S = S0 + 16 * (n & 1)
            O = O0 + 16 * q
            fill = list(fill)
            for hh in range(2):
                for k in range(4):
                    r = 8 * hh + 2 * k
                    A(f"v_exp_f32 {v(S + r)}, {v(S + r)}\nv_exp_f32 {v(S + r + 1)}, {v(S + r + 1)}")
                    if k > 0:
                        A(f"v_cvt_pk_bf16_f32 {v(P + 4 * hh + k - 1)}, {v(S + r - 2)}, {v(S + r - 1)}")
                    if hh == 1 and k == 0:
                        A(f"v_cvt_pk_bf16_f32 {v(P + 3)}, {v(S + 6)}, {v(S + 7)}")
                    if hh == 1 and k == 2:
                        A(f"{MF32} {v(O, 16)}, {a_(128 + 12 * j + 4, 4)}, {v(P, 4)}, {v(O, 16) if started[q] else '0'}")
                        started[q] = True
                    if fill:
                        A(fill.pop(0))
            for t in fill:
                A(t)
            A(f"v_cvt_pk_bf16_f32 {v(P + 7)}, {v(S + 14)}, {v(S + 15)}")
            return f"{MF32} {v(O, 16)}, {a_(128 + 12 * j + 8, 4)}, {v(P + 4, 4)}, {v(O, 16)}"

        A(s_mfma(0))
        A(s_mfma(1))
        A(body(0, []))
        A(s_mfma(2))
        A(body(1, []))
        A(body(2, []))
        self.stamp("local")
        self.poll(vT + 11, acquire=False)
        A(f"v_cmp_ne_u32 vcc, {s(sENT)}, {v(vT)}")
        A.raw("s_nop 1")
        A(f"s_cmp_eq_u32 vcc_hi, 0\ns_cselect_b32 {s(sFAST)}, {0 if self.force_slow else 1}, 0")
        self.stamp("kvpoll")
        A(f"s_lshl_b32 s63, {s(sHQ)}, 2\ns_add_u32 s63, s63, {s(sW)}\ns_lshl_b32 s70, s63, 17\ns_add_u32 s70, s70, {WS_KV - 4 * 4096}")
        A(f"s_lshl_b32 s71, {s(sB)}, 12\ns_add_u32 s70, s70, s71")
        ktok = {}
        for blk in range(4):
            ls = self.lab("kvs")
            A(f"s_add_u32 s71, s70, {blk * 4096}\ns_cmp_lt_u32 {s(sB)}, {4 - blk}\ns_cbranch_scc1 {ls}")
            for t in range(2):
                A(f"buffer_load_dwordx4 {a_(128 + 12 * (2 * blk + t), 4)}, {v(vO16)}, {WS}, s71 offen offset:{t * 2048} sc1")
            A("s_mov_b32 exec_lo, 0xffff\ns_mov_b32 exec_hi, 0xffff")
            for t in range(2):
                for k in range(2):
                    tok = A(f"buffer_load_dwordx4 {a_(128 + 12 * (2 * blk + t) + 4 + 4 * k, 4)}, {v(vT + 10)}, {WS}, s71 offen offset:{t * 2048 + 1024 + k * 512} sc1")
            A("s_mov_b64 exec, -1")
            A.label(ls)
            ktok[blk] = tok
        A(f"v_and_b32 {v(vT)}, 31, {v(vL)}\nv_lshrrev_b32 {v(vT + 1)}, 5, {v(vL)}\nv_lshlrev_b32 {v(vT)}, 10, {v(vT)}\nv_lshl_add_u32 {v(vT + 12)}, {v(vT + 1)}, 3, {v(vT)}")
        A(f"s_lshl_b32 s20, {s(sT)}, 15\ns_lshl_b32 s63, {s(sHQ)}, 7\ns_add_u32 s20, s20, s63\ns_lshl_b32 s63, {s(sHP)}, 6\ns_add_u32 s20, s20, s63")
        for j in range(4):
            self.xres = A(f"buffer_load_dwordx2 {v(176 + 2 * j, 2)}, {v(vT + 12)}, {X}, s20 offen offset:{j * 16}")
        self.pretouch()
        A(f"s_lshl_b32 s21, {s(sW)}, 15\ns_lshl_b32 s63, {s(sHQ)}, 7\ns_add_u32 s21, s21, s63")
        A(f"s_mul_i32 s22, {s(sTT)}, {32 * 3584}\ns_lshl_b32 s63, {s(sC)}, 7\ns_add_u32 s22, s22, s63")
        pf = []
        for u in range(4):
            pf.append([f"s_add_u32 s63, s21, {u * 128 * 1024}", f"s_add_u32 m0, {s(sW4K)}, {(6 + u) * SLOT}"] +
                      [f"buffer_load_dwordx4 {v(vD1024 + i)}, {WO}, s63 offen offset:{i * 1024} lds" for i in range(4)])
        for j in range(self.opt.get("npre", 6)):
            pf.append(self.gu_dma(j))
        A.wait(ktok[0])
        self.stamp("kv0")
        A(s_mfma(3))
        for n in range(3, 18):
            if n + 1 < 18:
                A.wait(ktok[tiles[n + 1][1] >> 1])
                A(s_mfma(n + 1))
            fill = pf.pop(0) if pf else []
            last = body(n, fill)
            if n == 6:
                self.wotok = ("vm", A.vm_issued)
            A(last)
        self.gutok = ("vm", A.vm_issued)
        self.stamp("attn")
        A(f"s_lshl_b32 s63, {s(sHQ)}, 2\ns_add_u32 s63, s63, {s(sW)}\ns_lshl_b32 s70, s63, 10\ns_lshl_b32 s71, {s(sB)}, 16\ns_add_u32 s70, s70, s71")
        A(f"s_add_u32 s70, s70, {WS_O}\ns_add_u32 s71, s70, 32768")
        A(f"s_lshl_b32 s72, {s(sB)}, 5\ns_add_u32 s72, s72, s63\ns_lshl_b32 s72, s72, 2\ns_add_u32 s72, s72, {WS_OF}")
        A.label("L_onorm")
        for q in range(2):
            O = O0 + 16 * q
            A(f"v_rcp_f32 {v(O + 9)}, {v(O + 8)}")
        for q in range(2):
            O = O0 + 16 * q
            for k in range(8):
                A(f"v_mul_f32 {v(O + k)}, {v(O + k)}, {v(O + 9)}")
            for k in range(4):
                A(f"v_cvt_pk_bf16_f32 {v(P + 4 * q + k)}, {v(O + 2 * k)}, {v(O + 2 * k + 1)}")
        A(f"buffer_store_dwordx4 {v(P, 4)}, {v(vO16)}, {WS}, s70 offen")
        self.otok = A(f"buffer_store_dwordx4 {v(P + 4, 4)}, {v(vO16)}, {WS}, s71 offen")

    def gu_dma(self, j):
        return ([f"s_add_u32 m0, {s(sW4K)}, {j * SLOT}", f"s_add_u32 s91, s22, {j * 64 * 3584}"] +
                [f"buffer_load_dwordx4 {v(vD3584 + i)}, {WGU}, s91 offen offset:{i * 1024} lds" for i in range(4)])

    def dn_dma(self, st):
        slot = (8 + st) % 9
        base = f"s_add_u32 s91, s23, {st * 131072}" if st < 7 else f"s_add_u32 s91, s80, {(st - 7) * 131072}"
        return ([f"s_add_u32 m0, {s(sW4K)}, {slot * SLOT}", base] +
                [f"buffer_load_dwordx4 {v(vD1024 + i)}, {WD}, s91 offen offset:{i * 1024} lds" for i in range(4)])

    def pretouch(self):
        A = self.A
        A(f"s_and_b32 {s(sPAR)}, {s(sC)}, 1\ns_lshl_b32 s63, {s(sG)}, 3\ns_add_u32 s63, s63, {s(sW)}")
        A(f"s_lshl_b32 {s(sTA)}, {s(sPAR)}, 2\ns_add_u32 {s(sTA)}, {s(sTA)}, s63\ns_xor_b32 {s(sTBB)}, {s(sTA)}, 4")
        A(f"s_lshr_b32 {s(sE)}, {s(sTB)}, 1")
        if not self.opt.get("pretouch", 1):
            return
        t0, t1, t2, t3 = vT, vT + 1, vT + 2, vT + 3
        A(f"v_and_b32 {v(t0)}, 7, {v(vL)}\nv_lshlrev_b32 {v(t0)}, 7, {v(t0)}\nv_bfe_u32 {v(t1)}, {v(vL)}, 3, 1")
        A(f"s_lshl_b32 s63, {s(sHQ)}, 2\ns_add_u32 s63, s63, {s(sW)}\ns_lshl_b32 s63, s63, 10\ns_lshl_b32 s73, {s(sB)}, 16\ns_add_u32 s63, s63, s73\ns_add_u32 s63, s63, {WS_O}")
        A(f"v_lshl_add_u32 {v(t2)}, {v(t1)}, 15, {v(t0)}\nv_add_u32 {v(t2)}, s63, {v(t2)}")
        A(f"s_lshl_b32 s63, {s(sT)}, 15\ns_lshl_b32 s73, {s(sHQ)}, 12\ns_add_u32 s63, s63, s73\ns_lshl_b32 s73, {s(sHP)}, 11\ns_add_u32 s63, s63, s73\ns_add_u32 s63, s63, {WS_H}")
        A(f"v_lshl_add_u32 {v(t3)}, {v(t1)}, 10, {v(t0)}\nv_add_u32 {v(t3)}, s63, {v(t3)}")
        A(f"v_cmp_gt_u32 vcc, 16, {v(vL)}\nv_cndmask_b32 {v(t2)}, {v(t3)}, {v(t2)}, vcc")
        A(f"s_lshl_b32 s63, {s(sT)}, 12\ns_lshl_b32 s73, {s(sHQ)}, 9\ns_add_u32 s63, s63, s73\ns_add_u32 s63, s63, {WS_ST}")
        A(f"v_and_b32 {v(t0)}, 0x180, {v(t0)}\nv_add_u32 {v(t3)}, s63, {v(t0)}")
        A(f"v_cmp_gt_u32 vcc, 32, {v(vL)}\nv_cndmask_b32 {v(t2)}, {v(t3)}, {v(t2)}, vcc")
        for lane, expr in ((40, f"s_lshl_b32 s63, {s(sB)}, 7\ns_add_u32 s63, s63, {WS_OF}"),
                           (41, f"s_lshl_b32 s63, {s(sT)}, 7\ns_add_u32 s63, s63, {WS_HF}"),
                           (42, f"s_lshl_b32 s63, {s(sT)}, 7\ns_add_u32 s63, s63, {WS_HHF}")):
            A(expr)
            A(f"v_writelane_b32 {v(t2)}, s63, {lane}")
        A(f"buffer_load_dword {v(vJ)}, {v(t2)}, {WS}, 0 offen sc1")

    def pretouch_hh(self):
        A = self.A
        if not self.opt.get("pretouch", 1):
            return
        t0, t1 = vT, vT + 1
        A(f"s_mul_i32 s63, {s(sTA)}, 114688\ns_mul_i32 s73, {s(sTBB)}, 114688\nv_mov_b32 {v(t0)}, s63\nv_mov_b32 {v(t1)}, s73")
        A(f"v_cmp_gt_u32 vcc, 32, {v(vL)}\nv_cndmask_b32 {v(t0)}, {v(t1)}, {v(t0)}, vcc")
        A(f"v_and_b32 {v(t1)}, 31, {v(vL)}\nv_lshl_add_u32 {v(t0)}, {v(t1)}, 7, {v(t0)}")
        A(f"s_min_u32 s63, {s(sC)}, 27\ns_lshl_b32 s63, s63, 12\ns_add_u32 s63, s63, {WS_HH}")
        A(f"buffer_load_dword {v(vJ)}, {v(t0)}, {WS}, s63 offen sc1")

    def wo(self):
        A = self.A
        aK, aS, rc = 64, 80, 96
        self.publish([self.otok], "s72")
        self.stamp("opub")
        A("s_barrier")
        A(f"s_mul_i32 s63, {s(sHP)}, {32768 - 8192}\ns_add_u32 s63, s63, {6 * SLOT}")
        A(f"v_add_u32 {v(vT + 2)}, s63, {v(vDN)}\nv_add_u32 {v(vT + 3)}, s63, {v(vDN + 1)}")
        for i in range(16):
            for ct in range(2):
                for j in range(2):
                    A(f"ds_read_b64_tr_b16 {a_(8 * i + 4 * ct + 2 * j, 2)}, {v(vT + 2 + ct)} offset:{i * 2048 + j * 1024}")
        A(f"s_lshl_b32 s63, {s(sB)}, 7\ns_lshl_b32 s73, {s(sHP)}, 6\ns_add_u32 s63, s63, s73\ns_add_u32 s63, s63, {WS_OF}")
        A(f"v_and_b32 {v(vT + 4)}, 15, {v(vL)}\nv_lshlrev_b32 {v(vT + 4)}, 2, {v(vT + 4)}\nv_add_u32 {v(vT + 11)}, s63, {v(vT + 4)}")
        self.poll(vT + 11)
        self.stamp("opoll")
        A(f"s_lshl_b32 s70, {s(sT)}, 15\ns_lshl_b32 s63, {s(sHP)}, 14\ns_add_u32 s70, s70, s63\ns_add_u32 s70, s70, {WS_O}")
        otok = []
        for i in range(16):
            if i % 4 == 0 and i:
                A("s_add_u32 s70, s70, 4096")
            otok.append(A(f"buffer_load_dwordx4 {a_(128 + 4 * i, 4)}, {v(vO16)}, {WS}, s70 offen offset:{(i & 3) * 1024} sc1"))
        A("s_waitcnt lgkmcnt(0)\ns_barrier")
        A(f"s_mul_i32 s63, {s(sHP)}, 14\ns_add_u32 s23, s63, {s(sE)}\ns_sub_u32 s80, s63, {s(sE)}\ns_add_u32 s80, s80, 1")
        A(f"s_lshl_b32 s81, s23, 12\ns_lshl_b32 s82, s80, 12\ns_lshl_b32 s83, s23, 2\ns_lshl_b32 s84, s80, 2")
        A(f"s_lshl_b32 s63, {s(sTT)}, 15\ns_lshl_b32 s73, {s(sHQ)}, 7\ns_add_u32 s63, s63, s73")
        A("s_lshl_b32 s23, s23, 16\ns_add_u32 s23, s23, s63\ns_lshl_b32 s80, s80, 16\ns_add_u32 s80, s80, s63")
        for j in range(self.opt.get("npre", 6), 8):
            for t in self.gu_dma(j):
                A(t)
        self.gutok = ("vm", A.vm_issued)
        for t in self.dn_dma(0):
            A(t)
        self.dntok = {0: ("vm", A.vm_issued)}
        self.pretouch_hh()
        for i in range(16):
            A.wait(otok[i])
            A(f"{MF32} {v(aK, 16)}, {a_(8 * i, 4)}, {a_(128 + 4 * i, 4)}, {v(aK, 16) if i else '0'}")
            A(f"{MF32} {v(aS, 16)}, {a_(8 * i + 4, 4)}, {a_(128 + 4 * i, 4)}, {v(aS, 16) if i else '0'}")
        self.stamp("womm")
        for j in range(8):
            A(f"v_lshlrev_b32 {v(vH + 2 * j)}, 16, {v(176 + j)}\nv_and_b32 {v(vH + 2 * j + 1)}, s66, {v(176 + j)}")
        self.reduce_pair(aK, aS, rc)
        for k in range(16):
            A(f"v_add_f32 {v(vH + k)}, {v(vH + k)}, {v(aK + k)}")
        pk = 112
        for k in range(8):
            A(f"v_cvt_pk_bf16_f32 {v(pk + k)}, {v(vH + 2 * k)}, {v(vH + 2 * k + 1)}")
        A(f"s_lshl_b32 s70, {s(sT)}, 15\ns_lshl_b32 s63, {s(sHQ)}, 12\ns_add_u32 s70, s70, s63\ns_lshl_b32 s63, {s(sHP)}, 11\ns_add_u32 s70, s70, s63\ns_add_u32 s70, s70, {WS_H}")
        A(f"buffer_store_dwordx4 {v(pk, 4)}, {v(vO16)}, {WS}, s70 offen")
        A(f"buffer_store_dwordx4 {v(pk + 4, 4)}, {v(vO16)}, {WS}, s70 offen offset:1024")
        su, sq = 120, 122
        A(f"v_pk_add_f32 {v(su, 2)}, {v(vH, 2)}, {v(vH + 2, 2)}\nv_pk_mul_f32 {v(sq, 2)}, {v(vH, 2)}, {v(vH, 2)}")
        A(f"v_pk_fma_f32 {v(sq, 2)}, {v(vH + 2, 2)}, {v(vH + 2, 2)}, {v(sq, 2)}")
        for k in range(2, 8):
            A(f"v_pk_add_f32 {v(su, 2)}, {v(su, 2)}, {v(vH + 2 * k, 2)}\nv_pk_fma_f32 {v(sq, 2)}, {v(vH + 2 * k, 2)}, {v(vH + 2 * k, 2)}, {v(sq, 2)}")
        A(f"v_add_f32 {v(su)}, {v(su)}, {v(su + 1)}\nv_add_f32 {v(su + 1)}, {v(sq)}, {v(sq + 1)}")
        A(f"v_mov_b32 {v(sq)}, {v(su)}\nv_mov_b32 {v(sq + 1)}, {v(su + 1)}")
        A(f"v_and_b32 {v(vT)}, 31, {v(vL)}\nv_lshlrev_b32 {v(vT)}, 4, {v(vT)}")
        A(f"v_permlane32_swap_b32 {v(su)}, {v(sq)}\nv_permlane32_swap_b32 {v(su + 1)}, {v(sq + 1)}")
        A(f"s_lshl_b32 s70, {s(sT)}, 12\ns_lshl_b32 s63, {s(sHQ)}, 9\ns_add_u32 s70, s70, s63\ns_lshl_b32 s63, {s(sHP)}, 3\ns_add_u32 s70, s70, s63\ns_add_u32 s70, s70, {WS_ST}")
        A(f"v_add_f32 {v(su)}, {v(su)}, {v(sq)}\nv_add_f32 {v(su + 1)}, {v(su + 1)}, {v(sq + 1)}")
        tok = A(f"buffer_store_dwordx2 {v(su, 2)}, {v(vT)}, {WS}, s70 offen")
        A(f"s_lshl_b32 s72, {s(sT)}, 7\ns_lshl_b32 s63, {s(sHQ)}, 3\ns_add_u32 s72, s72, s63\ns_lshl_b32 s63, {s(sHP)}, 2\ns_add_u32 s72, s72, s63\ns_add_u32 s72, s72, {WS_HF}")
        self.stamp("hst")
        self.publish([tok], "s72")
        self.stamp("hpub")

    def reduce_pair(self, aK, aS, rc):
        A = self.A
        A(f"s_add_u32 s63, {s(sW4K)}, {RED}\nv_add_u32 {v(vT)}, s63, {v(vO16)}\nv_xor_b32 {v(vT + 1)}, 0x2000, {v(vT)}")
        for k in range(4):
            A(f"ds_write_b128 {v(vT)}, {v(aS + 4 * k, 4)} offset:{k * 1024}")
        A("s_waitcnt lgkmcnt(0)\ns_barrier")
        toks = [A(f"ds_read_b128 {v(rc + 4 * k, 4)}, {v(vT + 1)} offset:{k * 1024}") for k in range(4)]
        for k in range(4):
            A.wait(toks[k])
            for e in range(4):
                A(f"v_add_f32 {v(aK + 4 * k + e)}, {v(aK + 4 * k + e)}, {v(rc + 4 * k + e)}")

    def stats_loads(self, sTile, dst):
        A = self.A
        A(f"s_lshl_b32 s63, {s(sTile)}, 12\ns_add_u32 s63, s63, {WS_ST}")
        for i in range(4):
            tok = A(f"buffer_load_dwordx4 {v(dst + 4 * i, 4)}, {v(vT + 13)}, {WS}, s63 offen offset:{i * 512} sc1")
        return tok

    def stats_reduce(self, src, out):
        L = []
        for k in range(1, 8):
            L += [f"v_add_f32 {v(src)}, {v(src)}, {v(src + 2 * k)}", f"v_add_f32 {v(src + 1)}, {v(src + 1)}, {v(src + 2 * k + 1)}"]
        L += [f"v_mov_b32 {v(src + 2)}, {v(src)}", f"v_mov_b32 {v(src + 3)}, {v(src + 1)}",
              f"v_permlane32_swap_b32 {v(src)}, {v(src + 2)}", f"v_permlane32_swap_b32 {v(src + 1)}, {v(src + 3)}",
              f"v_add_f32 {v(src)}, {v(src)}, {v(src + 2)}", f"v_add_f32 {v(src + 1)}, {v(src + 1)}, {v(src + 3)}",
              f"v_mul_f32 {v(out)}, s67, {v(src)}", f"v_mul_f32 {v(out + 1)}, s67, {v(src + 1)}"]
        return L

    def gu_reads(self, k):
        wf = 192 + 16 * (k & 1)
        grp, ks = k >> 2, k & 3
        hi = 4 if grp >= 4 else 0
        base = (grp & 3) * SLOT + ks * 2048
        return [f"ds_read_b64_tr_b16 {v(wf + 4 * cp + 2 * j, 2)}, {v(vGU + hi + cp)} offset:{base + j * 1024}" for cp in range(4) for j in range(2)]

    def gu_epilogue(self, acc, mean, sbase):
        cs, out = 232, []
        for cp in range(4):
            a0 = acc + 16 * cp
            L = [("sx", f"s_xor_b32 s63, {s(sW)}, {cp}\ns_lshl_b32 s85, s63, 7\ns_lshl_b32 s63, s63, 10\ns_add_u32 s86, s63, {s(sbase)}"),
                 ("v", f"v_add_u32 {v(vT + 2)}, s85, {v(vT + 12)}")]
            for j in range(4):
                L.append(("ds", f"ds_read_b128 {v(cs + 4 * j, 4)}, {v(vT + 2)} offset:{j * 32}"))
            L.append(("waitds", None))
            for r in range(16):
                L.append(("v", f"v_fma_f32 {v(a0 + r)}, -{v(mean)}, {v(cs + r)}, {v(a0 + r)}"))
            for r in range(8):
                L.append(("v", f"v_mul_f32 {v(a0 + r)}, {v(a0 + r)}, {v(a0 + 8 + r)}"))
            for r in range(4):
                L.append(("v", f"v_cvt_pk_bf16_f32 {v(a0 + 8 + r)}, {v(a0 + 2 * r)}, {v(a0 + 2 * r + 1)}"))
            L.append(("st", f"buffer_store_dwordx4 {v(a0 + 8, 4)}, {v(vO16)}, {WS}, s86 offen"))
            out += L
        return out

    def run_items(self, items, n, state):
        A = self.A
        while n > 0 and items:
            kind, t = items.pop(0)
            if kind == "waitds":
                A.wait(state["ds"])
                continue
            if kind == "waitvm":
                A.wait(t)
                continue
            if kind == "call":
                t()
                continue
            tok = A(t)
            if kind in ("ds", "st", "h2", "he") or kind.startswith("dn"):
                state[kind] = tok
            n -= 1

    def gu(self):
        A = self.A
        accA, accB, csa, sel = 64, 128, 224, 228
        mA, mB, mD = 248, 250, 252
        A(f"v_mov_b32 {v(vT + 2)}, {s(sT)}\nv_mov_b32 {v(vT + 3)}, {s(sTBB)}\nv_cmp_gt_u32 vcc, 32, {v(vL)}\nv_cndmask_b32 {v(vT + 2)}, {v(vT + 2)}, {v(vT + 3)}, vcc")
        A(f"v_mov_b32 {v(vT + 3)}, {s(sTA)}\nv_cmp_gt_u32 vcc, 16, {v(vL)}\nv_cndmask_b32 {v(vT + 2)}, {v(vT + 2)}, {v(vT + 3)}, vcc")
        A(f"v_lshl_add_u32 {v(vT + 2)}, {v(vT + 2)}, 7, {v(vT + 4)}\nv_add_u32 {v(vT + 11)}, {WS_HF}, {v(vT + 2)}")
        A(f"v_and_b32 {v(vT + 2)}, 31, {v(vL)}\nv_lshrrev_b32 {v(vT + 3)}, 5, {v(vL)}\nv_lshlrev_b32 {v(vT + 13)}, 4, {v(vT + 2)}")
        A(f"v_lshl_add_u32 {v(vT + 13)}, {v(vT + 3)}, 11, {v(vT + 13)}")
        A(f"v_lshlrev_b32 {v(vT + 12)}, 4, {v(vT + 3)}\nv_add_u32 {v(vT + 12)}, {RED}, {v(vT + 12)}")
        A(f"s_lshl_b32 s63, {s(sW)}, 7\ns_add_u32 s63, s63, {RED}\nv_lshl_add_u32 {v(vT + 9)}, {v(vT + 2)}, 2, s63")
        A(f"v_lshrrev_b32 {v(vT + 2)}, 2, {v(vL)}\nv_xor_b32 {v(vT + 2)}, {v(vT + 2)}, {v(vL)}\nv_bfe_u32 {v(vT + 2)}, {v(vT + 2)}, 2, 1")
        A(f"v_subrev_u32 {v(vT + 2)}, 1, {v(vT + 2)}\nv_and_b32 {v(sel)}, {ONES}, {v(vT + 2)}")
        for k in range(1, 4):
            A(f"v_mov_b32 {v(sel + k)}, {v(sel)}")
        A(f"v_min_u32 {v(vT + 2)}, 6, {v(vL)}\nv_lshlrev_b32 {v(vT + 2)}, 3, {v(vT + 2)}")
        A(f"s_lshl_b32 s63, {s(sT)}, 7\ns_add_u32 s63, s63, {WS_HHF}\ns_add_u32 s83, s83, s63\ns_add_u32 s84, s84, s63")
        A(f"v_add_u32 {v(vT + 7)}, s83, {v(vT + 2)}\nv_add_u32 {v(vT + 8)}, s84, {v(vT + 2)}")
        A(f"s_mul_i32 s63, {s(sT)}, 114688\ns_add_u32 s63, s63, {WS_HH}\ns_add_u32 s81, s81, s63\ns_add_u32 s82, s82, s63")
        for tile, sb, sf in ((sTA, 87, 89), (sTBB, 88, 90)):
            A(f"s_mul_i32 s{sb}, {s(tile)}, 114688\ns_lshl_b32 s63, {s(sC)}, 12\ns_add_u32 s{sb}, s{sb}, s63\ns_add_u32 s{sb}, s{sb}, {WS_HH}")
            A(f"s_lshl_b32 s{sf}, {s(tile)}, 7\ns_lshl_b32 s63, {s(sC)}, 2\ns_add_u32 s{sf}, s{sf}, s63\ns_add_u32 s{sf}, s{sf}, {WS_HHF}")
        self.poll(vT + 11)
        self.stamp("hpoll")
        A(f"s_cmp_ge_u32 {s(sC)}, 28\ns_cbranch_scc1 L_spare")
        A(f"s_lshl_b32 s70, {s(sTA)}, 15\ns_add_u32 s70, s70, {WS_H}\ns_lshl_b32 s71, {s(sTBB)}, 15\ns_add_u32 s71, s71, {WS_H}")
        h1 = []
        for k in range(32):
            if k % 4 == 0 and k:
                A("s_add_u32 s70, s70, 4096")
            h1.append(A(f"buffer_load_dwordx4 {a_(4 * k, 4)}, {v(vO16)}, {WS}, s70 offen offset:{(k & 3) * 1024} sc1"))
        A("s_barrier")
        state = {}
        rtok = None
        for t in self.gu_reads(0):
            rtok = A(t)
        h2items = []
        for k in range(32):
            if k % 4 == 0 and k:
                h2items.append("s_add_u32 s71, s71, 4096")
            h2items.append(f"buffer_load_dwordx4 {a_(128 + 4 * k, 4)}, {v(vO16)}, {WS}, s71 offen offset:{(k & 3) * 1024} sc1")
        h2 = []
        stat_at = {4: 0, 13: 1, 22: 2}
        pend = []
        for k in range(32):
            wf = 192 + 16 * (k & 1)
            nxt = self.gu_reads((k + 1) & 31)
            A.wait(h1[k], rtok)
            if k in stat_at:
                tile, out = ((sTA, mA), (sTBB, mB), (sT, mD))[stat_at[k]]
                stok = self.stats_loads(tile, 232)
                pend = [None] * 5 + [("w", stok)] + self.stats_reduce(232, out)
            for cp in range(4):
                A(f"{MF32} {v(accA + 16 * cp, 16)}, {v(wf + 4 * cp, 4)}, {a_(4 * k, 4)}, {v(accA + 16 * cp, 16) if k else '0'}")
                if cp == 0:
                    A(f"{MF16} {v(csa, 4)}, {v(sel, 4)}, {v(wf, 4)}, {v(csa, 4) if k else '0'}")
                rtok = A(nxt[2 * cp])
                rtok = A(nxt[2 * cp + 1])
                if cp == 1:
                    t = h2items.pop(0)
                    if t.startswith("s_add"):
                        A(t)
                        t = h2items.pop(0)
                    h2.append(A(t))
                if pend and pend[0] is None:
                    if cp == 3:
                        pend.pop(0)
                else:
                    for _ in range(2):
                        if pend:
                            t = pend.pop(0)
                            if isinstance(t, tuple):
                                A.wait(t[1])
                            else:
                                A(t)
        for t in pend:
            if isinstance(t, tuple):
                A.wait(t[1])
            elif t:
                A(t)
        self.stamp("gu1")
        A(f"ds_write_b32 {v(vT + 9)}, {v(csa)}")
        items = self.gu_epilogue(accA, mA, 87)
        he = []
        for k in range(32):
            wf = 192 + 16 * (k & 1)
            nxt = self.gu_reads(k + 1) if k < 31 else [None] * 8
            side = []
            if k % 4 == 0:
                A.wait(h2[k])
                A("s_waitcnt lgkmcnt(0)\ns_barrier")
                if k:
                    side = self.dn_dma(k // 4)
            else:
                A.wait(h2[k], rtok)
            if k == 20:
                assert not items
                self.publish([state["st"]], "s89")
            if k == 26:
                self.poll(vT + 7)
                self.stamp("hepoll")
            if k >= 26:
                for q in range(5):
                    n = len(he) + sum(1 for t in side if t.startswith("buffer_load_dwordx4 a"))
                    if n < 28:
                        if n % 4 == 0:
                            side.append(f"s_add_u32 s70, s81, {(n // 4) * 8192}")
                        side.append(f"buffer_load_dwordx4 {a_(4 * n, 4)}, {v(vO16)}, {WS}, s70 offen offset:{(n & 3) * 1024} sc1")
            for cp in range(4):
                A(f"{MF32} {v(accB + 16 * cp, 16)}, {v(wf + 4 * cp, 4)}, {a_(128 + 4 * k, 4)}, {v(accB + 16 * cp, 16) if k else '0'}")
                if nxt[0]:
                    rtok = A(nxt[2 * cp])
                    rtok = A(nxt[2 * cp + 1])
                take = (len(side) + 3 - cp) // (4 - cp)
                for _ in range(take):
                    t = side.pop(0)
                    tok = A(t)
                    if t.endswith("lds"):
                        self.dntok[k // 4] = tok
                    elif t.startswith("buffer_load"):
                        he.append(tok)
                if k >= 1:
                    self.run_items(items, 2, state)
        self.stamp("gu2")
        self.he = he
        A("s_barrier")
        for t in self.dn_dma(8):
            A(t)
        items = self.gu_epilogue(accB, mB, 88)
        self.run_items(items, 10000, state)
        self.publish([state["st"]], "s90")
        self.stamp("gupub")
        A.label("L_down")

    def spare(self):
        A = self.A
        A.label("L_spare")
        ln = self.lab("ne")
        A(f"s_cmp_lg_u32 s2, 248\ns_cbranch_scc1 {ln}\ns_cmp_lg_u32 {s(sW)}, 0\ns_cbranch_scc1 {ln}")
        for q in range(4):
            A(f"v_lshlrev_b32 {v(vT + 2)}, 2, {v(vL)}\nv_add_u32 {v(vT + 2)}, {WS_TAB + 256 * q}, {v(vT + 2)}")
            self.poll(vT + 2, acquire=False)
        A(f"s_mov_b32 s63, {WS_E}")
        A(f"buffer_store_dword {v(vTAG)}, off, {WS}, s63 sc1")
        A.label(ln)
        tok = self.stats_loads(sT, 232)
        for st in range(1, 9):
            for t in self.dn_dma(st):
                A(t)
        A.wait(tok)
        for t in self.stats_reduce(232, 252):
            A(t)
        self.poll(vT + 7)
        for n in range(28):
            if n % 4 == 0:
                A(f"s_add_u32 s70, s81, {(n // 4) * 8192}")
            A(f"buffer_load_dwordx4 {a_(4 * n, 4)}, {v(vO16)}, {WS}, s70 offen offset:{(n & 3) * 1024} sc1")
        A("s_waitcnt vmcnt(0)\ns_branch L_down")

    def dn_reads(self, k):
        wf = 192 + 8 * (k & 3)
        st, ks = k >> 2, k & 3
        slot = (8 + st) % 9
        rng = slot >> 2
        base = (slot & 3) * SLOT + ks * 2048
        return [f"ds_read_b64_tr_b16 {v(wf + 4 * ct + 2 * j, 2)}, {v(vDN + 2 * rng + ct)} offset:{base + j * 1024}" for ct in range(2) for j in range(2)]

    def down(self):
        A = self.A
        aK, aS, rc, mD = 64, 80, 96, 252
        A("s_barrier")
        rt = {}
        for k in range(2):
            for t in self.dn_reads(k):
                rt[k] = A(t)
        hl = []
        dn = {}
        LATE_AT = self.opt.get("late_at", 12)
        for k in range(56):
            st, ks = k >> 2, k & 3
            wf = 192 + 8 * (k & 3)
            side = []
            if ks == 2 and st + 1 < 14:
                if st + 1 in dn:
                    A.wait(dn[st + 1])
                if st + 1 in dn or (st >= 1 and st + 8 < 14):
                    A("s_barrier")
                if st >= 1 and st + 8 < 14:
                    side = self.dn_dma(st + 8)
            if k == LATE_AT:
                self.poll(vT + 8)
                self.stamp("hlpoll")
            if k >= LATE_AT:
                for q in range(2):
                    n = len(hl) + sum(1 for t in side if t.startswith("buffer_load_dwordx4 a"))
                    if n < 28:
                        if n % 4 == 0:
                            side.append(f"s_add_u32 s70, s82, {(n // 4) * 8192}")
                        side.append(f"buffer_load_dwordx4 {a_(128 + 4 * n, 4)}, {v(vO16)}, {WS}, s70 offen offset:{(n & 3) * 1024} sc1")
            nxt = self.dn_reads(k + 2) if k + 2 < 56 else None
            hf = a_(4 * k, 4) if k < 28 else a_(128 + 4 * (k - 28), 4)
            A.wait(rt[k], hl[k - 28] if k >= 28 else None)
            for ct, acc in ((0, aK), (1, aS)):
                A(f"{MF32} {v(acc, 16)}, {v(wf + 4 * ct, 4)}, {hf}, {v(acc, 16) if k else '0'}")
                if nxt:
                    A(nxt[2 * ct])
                    rt[k + 2] = A(nxt[2 * ct + 1])
                take = (len(side) + 1 - ct) // (2 - ct)
                for _ in range(take):
                    t = side.pop(0)
                    tok = A(t)
                    if t.endswith("lds"):
                        dn[st + 8] = tok
                    elif t.startswith("buffer_load"):
                        hl.append(tok)
        self.stamp("dnmm")
        A(f"v_fma_f32 {v(mD + 1)}, -{v(mD)}, {v(mD)}, {v(mD + 1)}\nv_max_f32 {v(mD + 1)}, 0, {v(mD + 1)}\nv_add_f32 {v(mD + 1)}, s68, {v(mD + 1)}")
        A(f"v_rcp_f32 {v(mD + 1)}, {v(mD + 1)}")
        A(f"v_and_b32 {v(vT + 2)}, 31, {v(vL)}\nv_lshrrev_b32 {v(vT + 3)}, 5, {v(vL)}\nv_lshlrev_b32 {v(vT + 2)}, 10, {v(vT + 2)}\nv_lshl_add_u32 {v(vT + 2)}, {v(vT + 3)}, 4, {v(vT + 2)}")
        self.reduce_pair(aK, aS, rc)
        for k in range(16):
            A(f"v_fma_f32 {v(aK + k)}, {v(aK + k)}, {v(mD + 1)}, {v(vH + k)}")
        pk = 112
        for k in range(8):
            A(f"v_cvt_pk_bf16_f32 {v(pk + k)}, {v(aK + 2 * k)}, {v(aK + 2 * k + 1)}")
        for hh in range(2):
            A(f"v_permlane32_swap_b32 {v(pk + 4 * hh)}, {v(pk + 4 * hh + 2)}\nv_permlane32_swap_b32 {v(pk + 4 * hh + 1)}, {v(pk + 4 * hh + 3)}")
        for hh in range(2):
            A(f"buffer_store_dwordx4 {v(pk + 4 * hh, 4)}, {v(vT + 2)}, {OUT}, s20 offen offset:{hh * 32} sc1")
        self.stamp("end")

    def build(self):
        A = self.A
        k = NAME + "_kernel"
        self.prologue()
        self.ln1()
        self.qkv()
        self.attention()
        self.wo()
        self.gu()
        self.down()
        self.finish_kernel()
        self.spare()
        A.label("L_exit")
        A("s_endpgm")
        body = A.finish(verbose=self.opt.get("verbose", False))
        ref = open(f"cdna_kernels/{NAME}.s.ref").read().split("\n") if not self.listform else []
        head = [ln for ln in ref if ln.startswith(";") and "@launch" not in ln and "Override" not in ln and "grid=ceil" not in ln]
        launch = f"; @launch {'kernel=' + k + ' ' if self.listform else ''}grid=(256,1,1) block=(256,1,1) lds=163840"
        return "\n".join(head + [launch, '.amdgcn_target "amdgcn-amd-amdhsa--gfx950"', ".text", f".globl {k}", ".p2align 8",
                                 f".type {k},@function", f"{k}:", body,
                                 "; padding: the text prefetch at entry reads 33 KiB from the kernel start",
                                 f".fill {self.opt.get('padw', 1024)}, 4, 0xbf800000",
                                 '.section .rodata,"a"', ".p2align 6", f".amdhsa_kernel {k}",
                                 "  .amdhsa_next_free_vgpr 512", "  .amdhsa_next_free_sgpr 102", "  .amdhsa_accum_offset 256",
                                 "  .amdhsa_group_segment_fixed_size 0", "  .amdhsa_kernarg_size 80", "  .amdhsa_user_sgpr_count 2",
                                 "  .amdhsa_user_sgpr_kernarg_segment_ptr 1", "  .amdhsa_system_sgpr_workgroup_id_x 1",
                                 ".end_amdhsa_kernel", ""])


if __name__ == "__main__":
    g = Gen(opt={"verbose": "-v" in sys.argv})
    txt = g.build()
    out = f"cdna_kernels/{NAME}.s"
    open(out, "w").write(txt)
    print("wrote", out, len(txt), "bytes; hazard pad states", g.A.pad_states)
```

```python
import sys
from asmlib import Asm

NAME = "sequential_preLN__sliding_block__glu_gated_bilinear__prompt"

WS_E, WS_TAB, WS_KVF, WS_OF, WS_HF, WS_HHF = 0x0, 0x400, 0x1000, 0x2000, 0x3000, 0x5000
WS_ST, WS_KV, WS_O, WS_H, WS_HH, WS_DBG = 0x10000, 0x100000, 0x500000, 0x700000, 0x900000, 0x1000000
WS_SIZE = 0x1000000
TAG_STEP = 0x9E3779B0
SLOT = 16384
XB = 5 * SLOT
XROW = 1040
XKV, XQ = 2 * SLOT, 9 * SLOT + 8192
RED = 9 * SLOT
ONES = 0x3F803F80
NEG = 0xFF800000
SPIN_MAX = 1 << 18

sW, sG, sC, sTB, sHQ, sB, sTAG, sFAST, sTT, sHP = 3, 4, 5, 6, 7, 8, 9, 10, 11, 12
sW4K, sENT, sT = 13, 14, 15
sPAR, sTA, sTBB, sE = 16, 17, 18, 19
X, WQ, WO, WGU, WD, OUT, WS = "s[24:27]", "s[28:31]", "s[32:35]", "s[36:39]", "s[40:43]", "s[44:47]", "s[48:51]"
vL, vO16 = 0, 1
vD3072, vD3584, vD1024 = 2, 6, 10
vXA, vWA = 14, 15
vGU = 17
vDN = 25
vST = 31
vH = 32
vTAG, vJ = 48, 49
vT = 50


def v(a, n=1):
    return f"v{a}" if n == 1 else f"v[{a}:{a + n - 1}]"


def a_(a, n=1):
    return f"a{a}" if n == 1 else f"a[{a}:{a + n - 1}]"


def s(a, n=1):
    return f"s{a}" if n == 1 else f"s[{a}:{a + n - 1}]"


MF32 = "v_mfma_f32_32x32x16_bf16"
MF16 = "v_mfma_f32_16x16x32_bf16"


class Gen:
    def __init__(self, stamps=False, stop=None, listform=False, force_slow=False, force_fb=False, opt=None):
        self.A = Asm()
        self.stamps, self.stop, self.listform = stamps, stop, listform
        self.force_slow, self.force_fb = force_slow, force_fb
        self.opt = opt or {}
        self.nlab = 0
        self.stamp_names = []
        self.tail = []

    def lab(self, p):
        self.nlab += 1
        return f"L_{p}{self.nlab}"

    def stamp(self, name):
        if not self.stamps:
            return
        i = len(self.stamp_names)
        self.stamp_names.append(name)
        self.A(f"s_memtime s[78:79]\ns_waitcnt lgkmcnt(0)\nv_writelane_b32 {v(vST)}, s78, {i}")

    def dma4(self, vbase, srd, soff, slot):
        A = self.A
        A(f"s_add_u32 m0, {s(sW4K)}, {slot * SLOT}")
        return [f"buffer_load_dwordx4 {v(vbase + i)}, {srd}, {soff} offen offset:{i * 1024} lds" for i in range(4)]

    def publish(self, toks, soff):
        A = self.A
        lf, ld = self.lab("pf"), self.lab("pd")
        A.wait(*toks)
        A(f"s_cmp_lg_u32 {s(sFAST)}, 0\ns_cbranch_scc1 {lf}")
        A.raw("buffer_wbl2 sc1")
        A.raw("s_waitcnt vmcnt(0)")
        A.raw(f"buffer_store_dword {v(vTAG)}, off, {WS}, {soff} sc1")
        A(f"s_branch {ld}")
        A.label(lf)
        A(f"buffer_store_dword {v(vTAG)}, off, {WS}, {soff}")
        A.label(ld)

    def poll(self, vaddr, acquire=True):
        A = self.A
        lp, ld = self.lab("poll"), self.lab("pollx")
        A("s_mov_b32 s60, 0")
        A.label(lp)
        A(f"buffer_load_dword {v(vT)}, {v(vaddr)}, {WS}, 0 offen sc1")
        A(f"s_add_u32 s60, s60, 1\ns_cmp_gt_u32 s60, {SPIN_MAX}\ns_waitcnt vmcnt(0)\ns_cbranch_scc1 {ld}")
        A(f"v_xor_b32 {v(vT + 1)}, {v(vT)}, {v(vTAG)}\nv_cmp_lt_u32 vcc, 15, {v(vT + 1)}\ns_cbranch_vccnz {lp}")
        A.label(ld)
        if acquire:
            self.acquire()

    def poll_issue(self, vaddr, dst):
        return self.A(f"buffer_load_dword {v(dst)}, {v(vaddr)}, {WS}, 0 offen sc1")

    def poll_check(self, tok, vaddr, dst):
        A = self.A
        ls, lb = self.lab("spin"), self.lab("back")
        A.wait(tok)
        A(f"v_xor_b32 {v(dst)}, {v(dst)}, {v(vTAG)}\nv_cmp_lt_u32 vcc, 15, {v(dst)}")
        A(f"s_cmp_eq_u32 {s(sFAST)}, 0\ns_cbranch_scc1 {ls}\ns_cbranch_vccnz {ls}")
        A.label(lb)
        self.tail.append((ls, lb, vaddr))

    def emit_tail(self):
        for ls, lb, vaddr in self.tail:
            self.A.label(ls)
            self.poll(vaddr)
            self.A(f"s_branch {lb}")

    def acquire(self):
        A = self.A
        lf = self.lab("aq")
        A(f"s_cmp_lg_u32 {s(sFAST)}, 0\ns_cbranch_scc1 {lf}")
        A.raw("buffer_inv sc1")
        A.raw("s_waitcnt vmcnt(0)")
        A.label(lf)

    def finish_kernel(self):
        A = self.A
        if self.stamps:
            A("s_memrealtime s[78:79]\ns_waitcnt lgkmcnt(0)")
            A(f"v_writelane_b32 {v(vST)}, s78, 63\nv_writelane_b32 {v(vST)}, s76, 62\nv_writelane_b32 {v(vST)}, {s(sFAST)}, 61")
            A(f"s_lshl_b32 s60, s2, 2\ns_add_u32 s60, s60, {s(sW)}\ns_lshl_b32 s60, s60, 8\ns_add_u32 s60, s60, {WS_DBG}")
            A(f"v_lshlrev_b32 {v(vT)}, 2, {v(vL)}")
            A(f"buffer_store_dword {v(vST)}, {v(vT)}, {WS}, s60 offen sc1")
        A("s_endpgm")

    def prologue(self):
        A = self.A
        A("s_cmp_ge_u32 s2, 256\ns_cbranch_scc1 L_exit")
        A(f"s_load_dwordx2 s[24:25], s[0:1], 0\ns_load_dwordx2 s[28:29], s[0:1], 8\ns_load_dwordx2 s[48:49], s[0:1], 72")
        A(f"s_load_dwordx2 s[32:33], s[0:1], 16\ns_load_dwordx4 s[52:55], s[0:1], 32\ns_load_dwordx4 s[56:59], s[0:1], 48")
        if self.stamps:
            A("s_memrealtime s[76:77]\ns_memtime s[92:93]")
            A(f"v_mov_b32 {v(vST)}, 0")
        A(f"v_lshrrev_b32 {v(vT)}, 6, v0\nv_and_b32 {v(vL)}, 63, v0")
        A(f"s_and_b32 {s(sG)}, s2, 7\ns_lshr_b32 {s(sC)}, s2, 3")
        A(f"v_readfirstlane_b32 {s(sW)}, {v(vT)}")
        A(f"s_getpc_b64 s[60:61]\ns_lshl_b32 s62, {s(sC)}, 10\nv_and_b32 {v(vT + 1)}, 7, {v(vL)}\nv_lshlrev_b32 {v(vT + 1)}, 7, {v(vT + 1)}")
        A(f"v_add_u32 {v(vT + 1)}, s62, {v(vT + 1)}")
        A(f"global_load_dword {v(vJ)}, {v(vT + 1)}, s[60:61]")
        A(f"s_and_b32 {s(sTB)}, {s(sC)}, 3\ns_lshr_b32 {s(sHQ)}, {s(sC)}, 2")
        A(f"s_lshl_b32 {s(sB)}, {s(sG)}, 2\ns_add_u32 {s(sB)}, {s(sB)}, {s(sTB)}")
        A(f"s_and_b32 {s(sTT)}, {s(sW)}, 1\ns_lshr_b32 {s(sHP)}, {s(sW)}, 1\ns_lshl_b32 {s(sW4K)}, {s(sW)}, 12")
        A(f"s_lshl_b32 {s(sT)}, {s(sB)}, 1\ns_add_u32 {s(sT)}, {s(sT)}, {s(sTT)}")
        for srd, size in ((24, 2048 * 1024), (28, 512 * 3072), (32, 512 * 1024), (40, 1792 * 1024), (44, 2048 * 1024),
                          (48, WS_SIZE + (0x100000 if self.stamps else 0))):
            A(f"s_mov_b32 s{srd + 2}, {size}\ns_mov_b32 s{srd + 3}, 0x20000")
        A("s_mov_b32 s39, 0x20000")
        A(f"v_lshlrev_b32 {v(vO16)}, 4, {v(vL)}")
        t0, t1, t2, t3 = vT, vT + 1, vT + 2, vT + 3
        A(f"v_lshrrev_b32 {v(t0)}, 3, {v(vL)}\nv_and_b32 {v(t1)}, 7, {v(vL)}")
        A(f"v_lshlrev_b32 {v(t2)}, 10, {v(t0)}\nv_lshl_add_u32 {v(vT + 4)}, {v(t1)}, 4, {v(t2)}\nv_add_u32 {v(vT + 5)}, 8192, {v(vT + 4)}")
        A(f"s_lshl_b32 s62, {s(sB)}, 16\ns_lshl_b32 s63, {s(sW)}, 14\ns_add_u32 s62, s62, s63")
        A(f"v_lshrrev_b32 {v(t2)}, 2, {v(vL)}\nv_and_b32 {v(t2)}, 4, {v(t2)}\nv_xor_b32 {v(t2)}, {v(t2)}, {v(t1)}\nv_lshlrev_b32 {v(t2)}, 4, {v(t2)}")
        A(f"v_mul_u32_u24 {v(t3)}, 3072, {v(t0)}\nv_add_u32 {v(vD3072)}, {v(t3)}, {v(t2)}")
        for i in range(1, 4):
            A(f"v_add_u32 {v(vD3072 + i)}, {i * (8 * 3072 - 1024)}, {v(vD3072)}")
        for i in range(8):
            A(f"s_add_u32 s63, {s(sHQ)}, {i}\ns_and_b32 s63, s63, 7\ns_lshl_b32 s{94 + i}, s63, 7")
        A("s_waitcnt lgkmcnt(0)")
        if self.stamps:
            self.stamp_names.append("start")
            A(f"v_writelane_b32 {v(vST)}, s92, 0")
            self.stamp("karg")
        A(f"s_load_dword {s(sTAG)}, s[48:49], {WS_E}")
        self.xtok = []
        for i in range(12):
            self.xload(i)
        A(f"s_mul_i32 s64, {s(sTT)}, {32 * 3072}\ns_lshl_b32 s63, {s(sHP)}, 10\ns_add_u32 s64, s64, s63")
        A(f"s_lshl_b32 s63, {s(sHQ)}, 7\ns_add_u32 s64, s64, s63\ns_add_u32 s64, s64, 1024")
        A(f"s_mul_i32 s65, {s(sW)}, {32 * 3072}\ns_add_u32 s65, s65, s63")
        self.dtok = {}
        A(f"s_mov_b32 s40, s56\ns_mov_b32 s41, s57\ns_mov_b32 s44, s58\ns_mov_b32 s45, s59")
        A(f"s_cmp_eq_u32 {s(sHP)}, 0\ns_cselect_b32 s36, s52, s54\ns_cselect_b32 s37, s53, s55")
        A(f"s_cmp_lt_u32 {s(sC)}, 28\ns_cselect_b32 s38, {512 * 3584}, 0")
        A(f"v_lshlrev_b32 {v(t3)}, 10, {v(t0)}\nv_add_u32 {v(vD1024)}, {v(t3)}, {v(t2)}")
        for i in range(1, 4):
            A(f"v_add_u32 {v(vD1024 + i)}, {i * (8 * 1024 - 1024)}, {v(vD1024)}")
        A(f"s_lshl_b32 s63, {s(sHP)}, 5\nv_xor_b32 {v(t2)}, s63, {v(t2)}")
        A(f"v_mul_u32_u24 {v(t3)}, 3584, {v(t0)}\nv_add_u32 {v(vD3584)}, {v(t3)}, {v(t2)}")
        for i in range(1, 4):
            A(f"v_add_u32 {v(vD3584 + i)}, {i * (8 * 3584 - 1024)}, {v(vD3584)}")
        A(f"s_mul_i32 s63, {s(sW)}, {16 * XROW}\ns_add_u32 s63, s63, {XB}")
        A(f"v_mul_u32_u24 {v(t3)}, {XROW}, {v(t0)}\nv_lshl_add_u32 {v(t3)}, {v(t1)}, 4, {v(t3)}\nv_add_u32 {v(vT + 6)}, s63, {v(t3)}")
        A(f"v_and_b32 {v(t0)}, 31, {v(vL)}\nv_lshrrev_b32 {v(t1)}, 5, {v(vL)}")
        A(f"s_mul_i32 s63, {s(sTT)}, {32 * XROW}\ns_add_u32 s63, s63, {XB}")
        A(f"v_mul_u32_u24 {v(t3)}, {XROW}, {v(t0)}\nv_lshl_add_u32 {v(t3)}, {v(t1)}, 4, {v(t3)}\nv_add_u32 {v(vXA)}, s63, {v(t3)}")
        r_, pc = vT + 7, vT + 8
        A(f"v_bfe_u32 {v(r_)}, {v(vL)}, 2, 2")
        A(f"v_and_b32 {v(t0)}, 3, {v(vL)}\nv_lshlrev_b32 {v(pc)}, 3, {v(t0)}")
        A(f"v_and_b32 {v(t0)}, 8, {v(vL)}\nv_lshl_add_u32 {v(pc)}, {v(t0)}, 3, {v(pc)}")
        A(f"v_and_b32 {v(t0)}, 16, {v(vL)}\nv_lshl_add_u32 {v(pc)}, {v(t0)}, 1, {v(pc)}")
        A(f"s_lshl_b32 s63, {s(sHP)}, 6\nv_xor_b32 {v(t2)}, s63, {v(pc)}")
        A(f"v_lshl_add_u32 {v(t3)}, {v(t1)}, 3, {v(r_)}\nv_lshl_add_u32 {v(vWA)}, {v(t3)}, 7, {v(t2)}")
        A(f"v_add_u32 {v(vWA + 1)}, 0x10000, {v(vWA)}")
        A(f"v_lshl_add_u32 {v(t3)}, {v(t1)}, 2, {v(r_)}\nv_lshlrev_b32 {v(t3)}, 7, {v(t3)}")
        A(f"s_lshl_b32 s63, {s(sHP)}, 13\nv_add3_u32 {v(vDN)}, {v(t3)}, {v(t2)}, s63\nv_xor_b32 {v(vDN + 1)}, 64, {v(vDN)}")
        for k in (1, 2):
            A(f"v_add_u32 {v(vDN + 2 * k)}, {k * 0x10000}, {v(vDN)}\nv_add_u32 {v(vDN + 2 * k + 1)}, {k * 0x10000}, {v(vDN + 1)}")
        A(f"v_lshl_add_u32 {v(t3)}, {v(t0)}, 9, {v(t3)}")
        for cp in range(4):
            A(f"s_xor_b32 s63, {s(sW)}, {cp}\ns_lshl_b32 s63, s63, 5\nv_xor_b32 {v(t2)}, s63, {v(pc)}")
            A(f"v_add_u32 {v(vGU + cp)}, {v(t3)}, {v(t2)}\nv_add_u32 {v(vGU + 4 + cp)}, 0x10000, {v(vGU + cp)}")
        for j in range(10):
            if j < 8 and j % 2 == 0:
                A(f"s_cmp_ge_u32 {s(sB)}, {4 - j // 2}\ns_cselect_b32 s63, {ONES}, 0\nv_mov_b32 {v(t0)}, s63")
            if j == 8:
                A(f"v_mov_b32 {v(t0)}, {ONES}")
            for k in range(8):
                A(f"v_accvgpr_write_b32 {a_(128 + 12 * j + 4 + k)}, {v(t0)}")
        lz = self.lab("kz")
        A(f"s_cmp_lg_u32 {s(sG)}, 0\ns_cbranch_scc1 {lz}")
        for j in range(8):
            for k in range(4):
                A(f"v_accvgpr_write_b32 {a_(128 + 12 * j + k)}, 0")
        A.label(lz)
        for i in range(8):
            A(f"v_add_u32 {v(200 + i)}, s{94 + i}, {v(vT + 6)}")
        for i in range(12, 16):
            self.xload(i)

    def xload(self, i):
        A = self.A
        if i % 2 == 0:
            A(f"s_add_u32 s63, s62, s{94 + (i >> 1)}")
        self.xtok.append(A(f"buffer_load_dwordx4 {v(68 + 8 * i, 4)}, {v(vT + 4 + (i & 1))}, {X}, s63 offen"))

    def grp(self, setup, vbase, srd, store, key):
        A = self.A
        items = [setup]
        for i in range(4):
            t = f"buffer_load_dwordx4 {v(vbase + i)}, {srd}, s91 offen offset:{i * 1024} lds"
            items.append(lambda t=t: store.__setitem__(key, A(t)))
        return items

    def emit(self, it):
        if callable(it):
            it()
        else:
            self.A(it)

    def s1_dma(self, n):
        m0 = f"s_add_u32 m0, {s(sW4K)}, {(n % 5) * SLOT}\n"
        if n < 8:
            su = f"s_lshl_b32 s91, {s(sTB)}, 1\ns_add_u32 s91, s91, {n}\ns_and_b32 s91, s91, 7\ns_mul_i32 s91, s91, {64 * 3072}\ns_add_u32 s91, s91, s64"
        else:
            su = f"s_add_u32 s91, {s(sTB)}, {n - 8}\ns_and_b32 s91, s91, 3\ns_mul_i32 s91, s91, {128 * 3072}\ns_add_u32 s91, s91, s65"
        return self.grp(m0 + su, vD3072, WQ, self.dtok, n)

    def wo_dma(self, i):
        su = (f"s_add_u32 s91, {s(sTB)}, {i}\ns_and_b32 s91, s91, 3\ns_lshl_b32 s61, s91, 14\ns_add_u32 s61, s61, {5 * SLOT}\n"
              f"s_add_u32 m0, {s(sW4K)}, s61\ns_lshl_b32 s91, s91, 17\ns_add_u32 s91, s91, s21")
        return self.grp(su, vD1024, WO, self.dtok, "wo")

    def ln1(self):
        A = self.A
        acc = 192
        for k in range(8):
            A(f"v_mov_b32 {v(acc + k)}, 0")
        A("s_mov_b32 s66, 0xffff0000")
        side = sum((self.s1_dma(n) for n in range(5)), [])
        for i in range(16):
            b = 64 + 8 * i
            su, sq = acc + 4 * (i & 1), acc + 4 * (i & 1) + 2
            A.wait(self.xtok[i])
            if i == 0:
                self.stamp("x0")
            if i >= self.opt.get("w_from", 2) and len(side) > 25 - 5 * self.opt.get("w_stats", 3):
                if not callable(side[0]):
                    self.emit(side.pop(0))
                self.emit(side.pop(0))
            for d in range(4):
                A(f"v_lshlrev_b32 {v(b + 2 * d)}, 16, {v(b + 4 + d)}\nv_and_b32 {v(b + 2 * d + 1)}, s66, {v(b + 4 + d)}")
                A(f"v_pk_add_f32 {v(su, 2)}, {v(su, 2)}, {v(b + 2 * d, 2)}")
                A(f"v_pk_fma_f32 {v(sq, 2)}, {v(b + 2 * d, 2)}, {v(b + 2 * d, 2)}, {v(sq, 2)}")
        self.stamp("xall")
        for k in range(4):
            A(f"v_add_f32 {v(acc + 2 * k)}, {v(acc + 2 * k)}, {v(acc + 2 * k + 1)}")
        for pat in ("quad_perm:[1,0,3,2]", "quad_perm:[2,3,0,1]", "row_half_mirror"):
            for k in range(4):
                A(f"v_add_f32_dpp {v(acc + 2 * k)}, {v(acc + 2 * k)}, {v(acc + 2 * k)} {pat} row_mask:0xf bank_mask:0xf")
        A("s_mov_b32 s67, 0x3b000000\ns_mov_b32 s68, 0x3727c5ac")
        for k in (0, 4):
            A(f"v_mul_f32 {v(acc + k)}, s67, {v(acc + k)}\nv_mul_f32 {v(acc + k + 2)}, s67, {v(acc + k + 2)}")
        for k in (0, 4):
            A(f"v_fma_f32 {v(acc + k + 2)}, -{v(acc + k)}, {v(acc + k)}, {v(acc + k + 2)}")
        for k in (0, 4):
            A(f"v_max_f32 {v(acc + k + 2)}, 0, {v(acc + k + 2)}\nv_add_f32 {v(acc + k + 2)}, s68, {v(acc + k + 2)}")
        for k in (0, 4):
            A(f"v_rsq_f32 {v(acc + k + 2)}, {v(acc + k + 2)}")
        for k in (0, 4):
            A(f"v_mul_f32 {v(acc + k)}, -{v(acc + k)}, {v(acc + k + 2)}")
        A("s_waitcnt lgkmcnt(0)")
        A(f"s_add_u32 {s(sTAG)}, {s(sTAG)}, {TAG_STEP}\ns_and_b32 {s(sTAG)}, {s(sTAG)}, 0xfffffff0")
        A(f"s_getreg_b32 {s(sENT)}, hwreg(HW_REG_XCC_ID)\ns_and_b32 {s(sENT)}, {s(sENT)}, 15\ns_or_b32 {s(sENT)}, {s(sENT)}, {s(sTAG)}")
        A(f"v_mov_b32 {v(vTAG)}, {s(sTAG)}")
        for i in range(16):
            b = 64 + 8 * i
            nb, rs = acc + 4 * (i & 1), acc + 4 * (i & 1) + 2
            for d in range(4):
                A(f"v_pk_fma_f32 {v(b + 2 * d, 2)}, {v(b + 2 * d, 2)}, {v(rs, 2)}, {v(nb, 2)} op_sel_hi:[1,0,0]")
            for d in range(4):
                A(f"v_cvt_pk_bf16_f32 {v(b + d)}, {v(b + 2 * d)}, {v(b + 2 * d + 1)}")
            A(f"ds_write_b128 {v(200 + (i >> 1))}, {v(b, 4)} offset:{(i & 1) * 8 * XROW}")
        self.stamp("ln1")
        for it in side:
            self.emit(it)

    def s1_reads(self, n):
        slot = n % 5
        wa, base = (vWA, slot * SLOT) if slot < 4 else (vWA + 1, slot * SLOT - 0x10000)
        wf = 64 + 32 * (n & 1)
        steps = []
        if n < 8:
            for ks in range(4):
                L = [f"ds_read_b128 {a_(16 * n + 4 * ks, 4)}, {v(vT + 9)} offset:{ks * 32}"]
                for part in range(2):
                    for j in range(2):
                        L.append(f"ds_read_b64_tr_b16 {v(wf + 8 * ks + 4 * part + 2 * j, 2)}, {v(wa)} offset:{base + part * 8192 + ks * 2048 + j * 512}")
                steps.append(L)
        else:
            for ks in range(8):
                steps.append([f"ds_read_b64_tr_b16 {v(wf + 4 * ks + 2 * j, 2)}, {v(wa)} offset:{base + ks * 2048 + j * 512}" for j in range(2)])
        return steps

    def s1_xaddr(self, n):
        A = self.A
        A(f"s_lshl_b32 s63, {s(sTB)}, 1\ns_add_u32 s63, s63, {n}\ns_and_b32 s63, s63, 7\ns_lshl_b32 s63, s63, 7")
        A(f"v_add_u32 {v(vT + 9)}, s63, {v(vXA)}")

    def s1_mfmas(self, n):
        wf = 64 + 32 * (n & 1)
        aK, aV, aQ = 224, 240, 208
        out = []
        if n < 8:
            for ks in range(4):
                first = n == 0 and ks == 0
                xf = a_(16 * n + 4 * ks, 4)
                out.append(f"{MF32} {v(aK, 16)}, {v(wf + 8 * ks, 4)}, {xf}, {'0' if first else v(aK, 16)}")
                out.append(f"{MF32} {v(aV, 16)}, {xf}, {v(wf + 8 * ks + 4, 4)}, {'0' if first else v(aV, 16)}")
        else:
            for ks in range(8):
                first = n == 8 and ks == 0
                out.append(f"{MF32} {v(aQ, 16)}, {v(wf + 4 * ks, 4)}, {a_(32 * (n - 8) + 4 * ks, 4)}, {'0' if first else v(aQ, 16)}")
        return out

    def interleave(self, mf, fill, vm=(), front=0):
        A = self.A
        k, vm, n = 0, list(vm), len(mf) - front
        nload = sum(1 for t in vm if callable(t))
        done = 0
        for i, m in enumerate(mf):
            A(m)
            upto = min(len(fill), (len(fill) * (i + 1) + n - 1) // n)
            while k < upto:
                A(fill[k])
                k += 1
            while vm and (not callable(vm[0]) or done * len(mf) < nload * i + 1):
                done += callable(vm[0])
                self.emit(vm.pop(0))
        for it in vm:
            self.emit(it)

    def qkv(self):
        A = self.A
        aK, aV, aQ = 224, 240, 208
        self.s1_xaddr(0)
        A.wait(self.dtok[0])
        A("s_waitcnt lgkmcnt(0)\ns_barrier")
        A(f"s_lshl_b32 s63, {s(sG)}, 5\ns_add_u32 s63, s63, {s(sC)}\ns_lshl_b32 s63, s63, 2\ns_add_u32 s69, s63, {WS_TAB}")
        A(f"v_mov_b32 {v(vT)}, {s(sENT)}")
        A(f"buffer_store_dword {v(vT)}, off, {WS}, s69 sc1")
        for st in self.s1_reads(0):
            for t in st:
                A(t)
        for n in range(7):
            self.s1_xaddr(n + 1)
            A.wait(self.dtok[n + 1])
            A("s_waitcnt lgkmcnt(0)\ns_barrier")
            self.interleave(self.s1_mfmas(n), sum(self.s1_reads(n + 1), []), self.s1_dma(n + 5), front=2)
        A("s_waitcnt lgkmcnt(0)")
        fill = [
            f"s_lshl_b32 s63, {s(sHQ)}, 1", f"s_add_u32 s63, s63, {s(sHP)}", "s_lshl_b32 s70, s63, 18",
            f"s_lshl_b32 s71, {s(sT)}, 11", "s_add_u32 s70, s70, s71", f"s_add_u32 s70, s70, {WS_KV}", "s_add_u32 s71, s70, 0x20000",
            "s_lshl_b32 s72, s63, 8", f"s_lshl_b32 s63, {s(sT)}, 2", "s_add_u32 s72, s72, s63", f"s_add_u32 s72, s72, {WS_KVF}",
            f"v_and_b32 {v(vT)}, 15, {v(vL)}", f"v_lshrrev_b32 {v(vT + 1)}, 5, {v(vL)}", f"v_lshlrev_b32 {v(vT)}, 4, {v(vT)}",
            f"v_lshl_add_u32 {v(vT + 10)}, {v(vT + 1)}, 8, {v(vT)}",
            f"v_and_b32 {v(vT)}, 16, {v(vL)}", f"v_lshl_add_u32 {v(vT + 2)}, {v(vT)}, 13, {v(vT + 10)}",
            f"v_lshl_add_u32 {v(vT + 3)}, {v(vT)}, 8, {v(vT + 10)}",
            f"s_lshl_b32 s63, {s(sHP)}, 13", f"s_lshl_b32 s73, {s(sTT)}, 11", "s_add_u32 s63, s63, s73", f"s_add_u32 s63, s63, {XKV}",
            f"v_add_u32 {v(vT + 3)}, s63, {v(vT + 3)}", f"v_add_u32 {v(vT + 4)}, s63, {v(vO16)}",
        ]
        self.interleave(self.s1_mfmas(7), fill)
        pk = 128
        for k in range(8):
            A(f"v_cvt_pk_bf16_f32 {v(pk + k)}, {v(aK + 2 * k)}, {v(aK + 2 * k + 1)}")
        A(f"buffer_store_dwordx4 {v(pk, 4)}, {v(vO16)}, {WS}, s70 offen sc1")
        A(f"buffer_store_dwordx4 {v(pk + 4, 4)}, {v(vO16)}, {WS}, s71 offen sc1")
        for k in range(8):
            A(f"v_cvt_pk_bf16_f32 {v(pk + 8 + k)}, {v(aV + 2 * k)}, {v(aV + 2 * k + 1)}")
        A(f"buffer_store_dwordx4 {v(pk + 8, 4)}, {v(vT + 2)}, {WS}, s70 offen offset:1024 sc1")
        kvtok = A(f"buffer_store_dwordx4 {v(pk + 12, 4)}, {v(vT + 2)}, {WS}, s70 offen offset:1536 sc1")
        self.stamp("kvst")
        A.wait(self.dtok[8])
        A("s_barrier")
        for st in self.s1_reads(8):
            for t in st:
                A(t)
        A(f"ds_write_b128 {v(vT + 4)}, {v(pk, 4)}\nds_write_b128 {v(vT + 4)}, {v(pk + 4, 4)} offset:4096")
        A(f"ds_write_b128 {v(vT + 3)}, {v(pk + 8, 4)} offset:1024\nds_write_b128 {v(vT + 3)}, {v(pk + 12, 4)} offset:1536")
        A(f"s_lshl_b32 s21, {s(sW)}, 15\ns_lshl_b32 s63, {s(sHQ)}, 7\ns_add_u32 s21, s21, s63")
        flag_at = self.opt.get("kvflag_at", 11)
        for n in range(8, 12):
            if n < 11:
                A.wait(self.dtok[n + 1])
                A("s_waitcnt lgkmcnt(0)\ns_barrier")
            else:
                A("s_waitcnt lgkmcnt(0)")
            if n == flag_at:
                A.wait(kvtok)
                A(f"buffer_store_dword {v(vTAG)}, off, {WS}, s72 sc1")
                self.stamp("kvflag")
            self.interleave(self.s1_mfmas(n), sum(self.s1_reads(n + 1), []) if n < 11 else [], self.wo_dma(n - 8), front=2)
        if flag_at == 12:
            A.wait(kvtok)
            A(f"buffer_store_dword {v(vTAG)}, off, {WS}, s72 sc1")
            self.stamp("kvflag")
        A(f"s_mov_b32 s63, 0x3eb8aa3b\ns_lshl_b32 s73, {s(sHP)}, 12\ns_lshl_b32 s74, {s(sTT)}, 10\ns_add_u32 s73, s73, s74\ns_add_u32 s73, s73, {XQ}")
        A(f"v_add_u32 {v(vT + 4)}, s73, {v(vO16)}")
        for k in range(16):
            A(f"v_mul_f32 {v(aQ + k)}, s63, {v(aQ + k)}")
        for k in range(8):
            A(f"v_cvt_pk_bf16_f32 {v(pk + k)}, {v(aQ + 2 * k)}, {v(aQ + 2 * k + 1)}")
        A(f"ds_write_b128 {v(vT + 4)}, {v(pk, 4)}\nds_write_b128 {v(vT + 4)}, {v(pk + 4, 4)} offset:2048")
        A(f"v_add_u32 {v(vT + 3)}, {s(sW4K)}, {v(vO16)}\nv_add_u32 {v(vT + 4)}, {s(sW4K)}, {v(vT + 10)}")
        A(f"s_lshl_b32 s63, {s(sW)}, 11\nv_add_u32 {v(vT + 5)}, s63, {v(vO16)}")
        A(f"v_add_u32 {v(vT + 3)}, {XKV}, {v(vT + 3)}\nv_add_u32 {v(vT + 4)}, {XKV}, {v(vT + 4)}\nv_add_u32 {v(vT + 5)}, {XQ}, {v(vT + 5)}")
        A("s_waitcnt lgkmcnt(0)\ns_barrier")
        A(f"ds_read_b128 {a_(248, 4)}, {v(vT + 5)}\nds_read_b128 {a_(252, 4)}, {v(vT + 5)} offset:1024")
        for t in range(2):
            A(f"ds_read_b128 {a_(128 + 12 * (8 + t), 4)}, {v(vT + 3)} offset:{t * 2048}")
        A("s_mov_b32 exec_lo, 0xffff\ns_mov_b32 exec_hi, 0xffff")
        for t in range(2):
            for k in range(2):
                A(f"ds_read_b128 {a_(128 + 12 * (8 + t) + 4 + 4 * k, 4)}, {v(vT + 4)} offset:{t * 2048 + 1024 + k * 512}")
        A("s_mov_b64 exec, -1")
        self.stamp("q")

    def attention(self):
        A = self.A
        mD, mF, S0, P, O0 = 64, 80, 96, 128, 144
        A(f"v_and_b32 {v(vT)}, 31, {v(vL)}\nv_lshrrev_b32 {v(vT + 1)}, 5, {v(vL)}\nv_lshlrev_b32 {v(vT + 1)}, 2, {v(vT + 1)}")
        A(f"v_sub_u32 {v(vT)}, {v(vT)}, {v(vT + 1)}\ns_mov_b32 s63, {NEG}")
        for r in range(16):
            kr = 8 * (r >> 2) + (r & 3)
            A(f"v_subrev_u32 {v(mD + r)}, {kr}, {v(vT)}\nv_ashrrev_i32 {v(mD + r)}, 31, {v(mD + r)}")
            A(f"v_and_b32 {v(mD + r)}, s63, {v(mD + r)}\nv_xor_b32 {v(mF + r)}, s63, {v(mD + r)}")
        A(f"s_lshl_b32 s63, {s(sHQ)}, 1\ns_add_u32 s63, s63, {s(sHP)}\ns_lshl_b32 s63, s63, 8\ns_add_u32 s63, s63, {WS_KVF}")
        A(f"s_lshl_b32 s73, {s(sB)}, 1\ns_sub_u32 s73, s73, 8\nv_add_u32 {v(vT + 1)}, s73, {v(vL)}")
        A(f"v_lshlrev_b32 {v(vT + 2)}, 2, {v(vT + 1)}\nv_add_u32 {v(vT + 2)}, s63, {v(vT + 2)}")
        A(f"s_lshl_b32 s63, {s(sG)}, 7\ns_add_u32 s63, s63, {WS_TAB}\nv_and_b32 {v(vT + 3)}, 31, {v(vL)}")
        A(f"v_lshlrev_b32 {v(vT + 3)}, 2, {v(vT + 3)}\nv_add_u32 {v(vT + 3)}, s63, {v(vT + 3)}")
        A(f"v_cmp_gt_u32 vcc, 8, {v(vL)}\nv_cmp_le_i32 s[74:75], 0, {v(vT + 1)}\ns_and_b64 vcc, vcc, s[74:75]")
        A(f"v_cndmask_b32 {v(vT + 11)}, {v(vT + 3)}, {v(vT + 2)}, vcc")
        A("s_waitcnt lgkmcnt(0)")

        tiles = [(0, 8, "d"), (1, 8, ""), (1, 9, "d"), (0, 0, "f"), (0, 1, ""), (1, 1, "f")]
        for j in range(2, 8):
            tiles += [(0, j, ""), (1, j, "")]
        started = [False, False]

        def s_mfma(n):
            q, j, m = tiles[n]
            c = {"": "0", "d": v(mD, 16), "f": v(mF, 16)}[m]
            return f"{MF32} {v(S0 + 16 * (n & 1), 16)}, {a_(128 + 12 * j, 4)}, {a_(248 + 4 * q, 4)}, {c}"

        def body(n, fill, head=None):
            q, j, m = tiles[n]
            S = S0 + 16 * (n & 1)
            O = O0 + 16 * q
            fill = list(fill)
            per = (len(fill) + 7) // 8
            for hh in range(2):
                for k in range(4):
                    r = 8 * hh + 2 * k
                    A(f"v_exp_f32 {v(S + r)}, {v(S + r)}\nv_exp_f32 {v(S + r + 1)}, {v(S + r + 1)}")
                    if hh == 0 and k == 0 and head:
                        A(head)
                    if k > 0:
                        A(f"v_cvt_pk_bf16_f32 {v(P + 4 * hh + k - 1)}, {v(S + r - 2)}, {v(S + r - 1)}")
                    if hh == 1 and k == 0:
                        A(f"v_cvt_pk_bf16_f32 {v(P + 3)}, {v(S + 6)}, {v(S + 7)}")
                    if hh == 1 and k == 2:
                        A(f"{MF32} {v(O, 16)}, {a_(128 + 12 * j + 4, 4)}, {v(P, 4)}, {v(O, 16) if started[q] else '0'}")
                        started[q] = True
                    for _ in range(per):
                        if fill:
                            self.emit(fill.pop(0))
            A(f"v_cvt_pk_bf16_f32 {v(P + 7)}, {v(S + 14)}, {v(S + 15)}")
            return f"{MF32} {v(O, 16)}, {a_(128 + 12 * j + 8, 4)}, {v(P + 4, 4)}, {v(O, 16)}"

        ktok = {}

        def kv_block(blk):
            ls = self.lab("kvs")
            A(f"s_add_u32 s71, s70, {blk * 4096}\ns_cmp_lt_u32 {s(sB)}, {4 - blk}\ns_cbranch_scc1 {ls}")
            for t in range(2):
                A(f"buffer_load_dwordx4 {a_(128 + 12 * (2 * blk + t), 4)}, {v(vO16)}, {WS}, s71 offen offset:{t * 2048} sc1")
            A("s_mov_b32 exec_lo, 0xffff\ns_mov_b32 exec_hi, 0xffff")
            for t in range(2):
                for k in range(2):
                    ktok[blk] = A(f"buffer_load_dwordx4 {a_(128 + 12 * (2 * blk + t) + 4 + 4 * k, 4)}, {v(vT + 10)}, {WS}, s71 offen offset:{t * 2048 + 1024 + k * 512} sc1")
            A("s_mov_b64 exec, -1")
            A.label(ls)

        A(f"s_lshl_b32 s63, {s(sHQ)}, 2\ns_add_u32 s63, s63, {s(sW)}\ns_lshl_b32 s70, s63, 17\ns_add_u32 s70, s70, {WS_KV - 4 * 4096}")
        A(f"s_lshl_b32 s71, {s(sB)}, 12\ns_add_u32 s70, s70, s71")
        A(f"v_and_b32 {v(vT)}, 31, {v(vL)}\nv_lshrrev_b32 {v(vT + 1)}, 5, {v(vL)}\nv_lshlrev_b32 {v(vT)}, 10, {v(vT)}\nv_lshl_add_u32 {v(vT + 12)}, {v(vT + 1)}, 3, {v(vT)}")
        A(f"s_lshl_b32 s20, {s(sT)}, 15\ns_lshl_b32 s63, {s(sHQ)}, 7\ns_add_u32 s20, s20, s63\ns_lshl_b32 s63, {s(sHP)}, 6\ns_add_u32 s20, s20, s63")
        A(f"s_mul_i32 s22, {s(sTT)}, {32 * 3584}\ns_lshl_b32 s63, {s(sC)}, 7\ns_add_u32 s22, s22, s63")
        pt = self.pretouch()
        A(f"s_mul_i32 s63, {s(sHP)}, {32768 - 8192}\ns_add_u32 s63, s63, {5 * SLOT}")
        A(f"v_add_u32 {v(vT + 2)}, s63, {v(vDN)}\nv_add_u32 {v(vT + 3)}, s63, {v(vDN + 1)}")
        woreads = [f"ds_read_b64_tr_b16 {a_(8 * i + 4 * ct + 2 * j, 2)}, {v(vT + 2 + ct)} offset:{i * 2048 + j * 1024}"
                   for i in range(16) for ct in range(2) for j in range(2)]
        self.gtok = {}
        nb = self.opt.get("local_before", 1)
        A(s_mfma(0))
        head = None
        for n in range(3):
            if n == nb:
                break
            if n < 2:
                A(s_mfma(n + 1))
            head = body(n, [], head)
        if head:
            A(head)
            head = None
        self.stamp("local")
        self.poll(vT + 11, acquire=False)
        A(f"v_cmp_ne_u32 vcc, {s(sENT)}, {v(vT)}")
        kv_block(0)
        kv_block(1)
        A(f"s_cmp_eq_u32 vcc_hi, 0\ns_cselect_b32 {s(sFAST)}, {0 if self.force_slow else 1}, 0")
        self.stamp("kvpoll")
        A("s_barrier")
        if nb == 3:
            for t in woreads:
                A(t)
        for n in range(nb, 3):
            if n < 2:
                A(s_mfma(n + 1))
            k0, k1 = 64 * (n - nb) // (3 - nb), 64 * (n + 1 - nb) // (3 - nb)
            head = body(n, woreads[k0:k1], head)
        kv_block(2)
        A("s_waitcnt lgkmcnt(0)\ns_barrier")
        fills = {n: [] for n in range(3, 18)}
        fills[3] = [lambda: kv_block(3)]
        xr = [f"buffer_load_dwordx2 {v(176 + 2 * j, 2)}, {v(vT + 12)}, {X}, s20 offen offset:{j * 16}" for j in range(4)]
        fills[5] = xr + pt
        npD = self.opt.get("npD", 3)
        d0, dstep = self.opt.get("d0", 6), self.opt.get("dstep", 2)
        for j in range(npD):
            g = self.gu_dma(j)
            n = d0 + dstep * j
            if dstep >= 2:
                fills[n] += g[:3]
                fills[n + 1] += g[3:]
            else:
                fills[n] += g
        A.wait(ktok[0])
        self.stamp("kv0")
        A(s_mfma(3))
        for n in range(3, 18):
            if n + 1 < 18:
                A.wait(ktok.get(tiles[n + 1][1] >> 1))
                A(s_mfma(n + 1))
            head = body(n, fills[n], head)
        A(head)
        self.stamp("attn")
        A(f"s_lshl_b32 s63, {s(sHQ)}, 2\ns_add_u32 s63, s63, {s(sW)}\ns_lshl_b32 s70, s63, 10\ns_lshl_b32 s71, {s(sB)}, 16\ns_add_u32 s70, s70, s71")
        A(f"s_add_u32 s70, s70, {WS_O}\ns_add_u32 s71, s70, 32768")
        A(f"s_lshl_b32 s72, {s(sB)}, 5\ns_add_u32 s72, s72, s63\ns_lshl_b32 s72, s72, 2\ns_add_u32 s72, s72, {WS_OF}")
        for q in range(2):
            O = O0 + 16 * q
            A(f"v_rcp_f32 {v(O + 9)}, {v(O + 8)}")
            for k in range(8):
                A(f"v_mul_f32 {v(O + k)}, {v(O + k)}, {v(O + 9)}")
            for k in range(4):
                A(f"v_cvt_pk_bf16_f32 {v(P + 8 + 4 * q + k)}, {v(O + 2 * k)}, {v(O + 2 * k + 1)}")
            self.otok = A(f"buffer_store_dwordx4 {v(P + 8 + 4 * q, 4)}, {v(vO16)}, {WS}, s{70 + q} offen")
        self.ngu = npD

    def gu_dma(self, j):
        su = (f"s_add_u32 m0, {s(sW4K)}, {j * SLOT}\ns_add_u32 s91, {s(sG)}, {j}\ns_and_b32 s91, s91, 7\n"
              f"s_mul_i32 s91, s91, {64 * 3584}\ns_add_u32 s91, s91, s22")
        return self.grp(su, vD3584, WGU, self.gtok, j)

    def gu_more(self, n):
        out = []
        for _ in range(n):
            if self.ngu < 8:
                out += self.gu_dma(self.ngu)
                self.ngu += 1
        return out

    def dn_dma(self, st):
        slot = (8 + st) % 9
        base = f"s_add_u32 s91, s23, {st * 131072}" if st < 7 else f"s_add_u32 s91, s80, {(st - 7) * 131072}"
        return self.grp(f"s_add_u32 m0, {s(sW4K)}, {slot * SLOT}\n" + base, vD1024, WD, self.dntok, st)

    def pretouch(self):
        A = self.A
        A(f"s_and_b32 {s(sPAR)}, {s(sC)}, 1\ns_lshl_b32 s63, {s(sG)}, 3\ns_add_u32 s63, s63, {s(sW)}")
        A(f"s_lshl_b32 {s(sTA)}, {s(sPAR)}, 2\ns_add_u32 {s(sTA)}, {s(sTA)}, s63\ns_xor_b32 {s(sTBB)}, {s(sTA)}, 4")
        A(f"s_lshr_b32 {s(sE)}, {s(sTB)}, 1")
        if not self.opt.get("pretouch", 1):
            return []
        t0, t1, t2, t3 = vT, vT + 1, vT + 6, vT + 3
        A(f"v_and_b32 {v(t0)}, 7, {v(vL)}\nv_lshlrev_b32 {v(t0)}, 7, {v(t0)}\nv_bfe_u32 {v(t1)}, {v(vL)}, 3, 1")
        A(f"s_lshl_b32 s63, {s(sHQ)}, 2\ns_add_u32 s63, s63, {s(sW)}\ns_lshl_b32 s63, s63, 10\ns_lshl_b32 s73, {s(sB)}, 16\ns_add_u32 s63, s63, s73\ns_add_u32 s63, s63, {WS_O}")
        A(f"v_lshl_add_u32 {v(t2)}, {v(t1)}, 15, {v(t0)}\nv_add_u32 {v(t2)}, s63, {v(t2)}")
        A(f"s_lshl_b32 s63, {s(sT)}, 15\ns_lshl_b32 s73, {s(sHQ)}, 12\ns_add_u32 s63, s63, s73\ns_lshl_b32 s73, {s(sHP)}, 11\ns_add_u32 s63, s63, s73\ns_add_u32 s63, s63, {WS_H}")
        A(f"v_lshl_add_u32 {v(t3)}, {v(t1)}, 10, {v(t0)}\nv_add_u32 {v(t3)}, s63, {v(t3)}")
        A(f"v_cmp_gt_u32 vcc, 16, {v(vL)}\nv_cndmask_b32 {v(t2)}, {v(t3)}, {v(t2)}, vcc")
        A(f"s_lshl_b32 s63, {s(sT)}, 12\ns_lshl_b32 s73, {s(sHQ)}, 9\ns_add_u32 s63, s63, s73\ns_add_u32 s63, s63, {WS_ST}")
        A(f"v_and_b32 {v(t0)}, 0x180, {v(t0)}\nv_add_u32 {v(t3)}, s63, {v(t0)}")
        A(f"v_cmp_gt_u32 vcc, 32, {v(vL)}\nv_cndmask_b32 {v(t2)}, {v(t3)}, {v(t2)}, vcc")
        for lane, expr in ((40, f"s_lshl_b32 s63, {s(sB)}, 7\ns_add_u32 s63, s63, {WS_OF}"),
                           (41, f"s_lshl_b32 s63, {s(sT)}, 7\ns_add_u32 s63, s63, {WS_HF}"),
                           (42, f"s_lshl_b32 s63, {s(sT)}, 7\ns_add_u32 s63, s63, {WS_HHF}")):
            A(expr)
            A(f"v_writelane_b32 {v(t2)}, s63, {lane}")
        return [f"buffer_load_dword {v(vJ)}, {v(t2)}, {WS}, 0 offen sc1"]

    def pretouch_hh(self):
        A = self.A
        if not self.opt.get("pretouch_hh", 1):
            return []
        t0, t1 = vT + 6, vT + 1
        A(f"s_mul_i32 s63, {s(sTA)}, 114688\ns_mul_i32 s73, {s(sTBB)}, 114688\nv_mov_b32 {v(t0)}, s63\nv_mov_b32 {v(t1)}, s73")
        A(f"v_cmp_gt_u32 vcc, 32, {v(vL)}\nv_cndmask_b32 {v(t0)}, {v(t1)}, {v(t0)}, vcc")
        A(f"v_and_b32 {v(t1)}, 31, {v(vL)}\nv_lshl_add_u32 {v(t0)}, {v(t1)}, 7, {v(t0)}")
        A(f"s_min_u32 s63, {s(sC)}, 27\ns_lshl_b32 s63, s63, 12\ns_add_u32 s63, s63, {WS_HH}\nv_add_u32 {v(t0)}, s63, {v(t0)}")
        return [lambda: A(f"buffer_load_dword {v(vJ)}, {v(t0)}, {WS}, 0 offen sc1")]

    def wo(self):
        A = self.A
        aK, aS, rc = 64, 80, 96
        for it in self.gu_more(self.opt.get("npE", 0)):
            self.emit(it)
        A(f"s_lshl_b32 s63, {s(sB)}, 7\ns_lshl_b32 s73, {s(sHP)}, 6\ns_add_u32 s63, s63, s73\ns_add_u32 s63, s63, {WS_OF}")
        A(f"v_and_b32 {v(vT + 4)}, 15, {v(vL)}\nv_lshlrev_b32 {v(vT + 4)}, 2, {v(vT + 4)}\nv_add_u32 {v(vT + 11)}, s63, {v(vT + 4)}")
        A(f"s_mul_i32 s63, {s(sHP)}, 14\ns_add_u32 s23, s63, {s(sE)}\ns_sub_u32 s80, s63, {s(sE)}\ns_add_u32 s80, s80, 1")
        A(f"s_lshl_b32 s81, s23, 12\ns_lshl_b32 s82, s80, 12\ns_lshl_b32 s83, s23, 2\ns_lshl_b32 s84, s80, 2")
        A(f"s_lshl_b32 s63, {s(sTT)}, 15\ns_lshl_b32 s73, {s(sHQ)}, 7\ns_add_u32 s63, s63, s73")
        A("s_lshl_b32 s23, s23, 16\ns_add_u32 s23, s23, s63\ns_lshl_b32 s80, s80, 16\ns_add_u32 s80, s80, s63")
        A(f"s_lshl_b32 s70, {s(sT)}, 15\ns_lshl_b32 s63, {s(sHP)}, 14\ns_add_u32 s70, s70, s63\ns_add_u32 s70, s70, {WS_O}")
        self.pthh = self.pretouch_hh()
        self.gu_setup()
        self.dntok = {}
        self.publish([self.otok], "s72")
        self.stamp("opub")
        for j in range(8):
            A(f"v_lshlrev_b32 {v(vH + 2 * j)}, 16, {v(176 + j)}\nv_and_b32 {v(vH + 2 * j + 1)}, s66, {v(176 + j)}")
        self.poll(vT + 11)
        self.stamp("opoll")
        otok = []
        ol = []
        for i in range(16):
            if i % 4 == 0 and i:
                ol.append("s_add_u32 s70, s70, 4096")
            ol.append(lambda i=i: otok.append(A(f"buffer_load_dwordx4 {a_(128 + 4 * i, 4)}, {v(vO16)}, {WS}, s70 offen offset:{(i & 3) * 1024} sc1")))
        side = ol + self.gu_more(self.opt.get("npF", 2))
        while len(otok) < 8:
            self.emit(side.pop(0))
        for i in range(16):
            A.wait(otok[i])
            A(f"{MF32} {v(aS, 16)}, {a_(8 * i + 4, 4)}, {a_(128 + 4 * i, 4)}, {v(aS, 16) if i else '0'}")
            A(f"{MF32} {v(aK, 16)}, {a_(8 * i, 4)}, {a_(128 + 4 * i, 4)}, {v(aK, 16) if i else '0'}")
            if side and not callable(side[0]):
                self.emit(side.pop(0))
            if side:
                self.emit(side.pop(0))
        for it in side:
            self.emit(it)
        self.stamp("womm")
        self.reduce_pair(aK, aS, rc)
        for k in range(16):
            A(f"v_add_f32 {v(vH + k)}, {v(vH + k)}, {v(aK + k)}")
        pk = 112
        for k in range(8):
            A(f"v_cvt_pk_bf16_f32 {v(pk + k)}, {v(vH + 2 * k)}, {v(vH + 2 * k + 1)}")
        A(f"s_lshl_b32 s70, {s(sT)}, 15\ns_lshl_b32 s63, {s(sHQ)}, 12\ns_add_u32 s70, s70, s63\ns_lshl_b32 s63, {s(sHP)}, 11\ns_add_u32 s70, s70, s63\ns_add_u32 s70, s70, {WS_H}")
        A(f"buffer_store_dwordx4 {v(pk, 4)}, {v(vO16)}, {WS}, s70 offen")
        A(f"buffer_store_dwordx4 {v(pk + 4, 4)}, {v(vO16)}, {WS}, s70 offen offset:1024")
        su, sq = 120, 122
        A(f"v_pk_add_f32 {v(su, 2)}, {v(vH, 2)}, {v(vH + 2, 2)}\nv_pk_mul_f32 {v(sq, 2)}, {v(vH, 2)}, {v(vH, 2)}")
        A(f"v_pk_fma_f32 {v(sq, 2)}, {v(vH + 2, 2)}, {v(vH + 2, 2)}, {v(sq, 2)}")
        for k in range(2, 8):
            A(f"v_pk_add_f32 {v(su, 2)}, {v(su, 2)}, {v(vH + 2 * k, 2)}\nv_pk_fma_f32 {v(sq, 2)}, {v(vH + 2 * k, 2)}, {v(vH + 2 * k, 2)}, {v(sq, 2)}")
        A(f"v_add_f32 {v(su)}, {v(su)}, {v(su + 1)}\nv_add_f32 {v(su + 1)}, {v(sq)}, {v(sq + 1)}")
        A(f"v_mov_b32 {v(sq)}, {v(su)}\nv_mov_b32 {v(sq + 1)}, {v(su + 1)}")
        A(f"v_and_b32 {v(vT)}, 31, {v(vL)}\nv_lshlrev_b32 {v(vT)}, 4, {v(vT)}")
        A(f"v_permlane32_swap_b32 {v(su)}, {v(sq)}\nv_permlane32_swap_b32 {v(su + 1)}, {v(sq + 1)}")
        A(f"s_lshl_b32 s70, {s(sT)}, 12\ns_lshl_b32 s63, {s(sHQ)}, 9\ns_add_u32 s70, s70, s63\ns_lshl_b32 s63, {s(sHP)}, 3\ns_add_u32 s70, s70, s63\ns_add_u32 s70, s70, {WS_ST}")
        A(f"v_add_f32 {v(su)}, {v(su)}, {v(sq)}\nv_add_f32 {v(su + 1)}, {v(su + 1)}, {v(sq + 1)}")
        tok = A(f"buffer_store_dwordx2 {v(su, 2)}, {v(vT)}, {WS}, s70 offen")
        A(f"s_lshl_b32 s72, {s(sT)}, 7\ns_lshl_b32 s63, {s(sHQ)}, 3\ns_add_u32 s72, s72, s63\ns_lshl_b32 s63, {s(sHP)}, 2\ns_add_u32 s72, s72, s63\ns_add_u32 s72, s72, {WS_HF}")
        self.stamp("hst")
        for it in self.gu_more(self.opt.get("npG", 0)):
            self.emit(it)
        self.publish([tok], "s72")
        self.stamp("hpub")

    def reduce_pair(self, aK, aS, rc):
        A = self.A
        A(f"s_add_u32 s63, {s(sW4K)}, {RED}\nv_add_u32 {v(vT)}, s63, {v(vO16)}\nv_xor_b32 {v(vT + 1)}, 0x2000, {v(vT)}")
        for k in range(4):
            A(f"ds_write_b128 {v(vT)}, {v(aS + 4 * k, 4)} offset:{k * 1024}")
        A("s_waitcnt lgkmcnt(0)\ns_barrier")
        toks = [A(f"ds_read_b128 {v(rc + 4 * k, 4)}, {v(vT + 1)} offset:{k * 1024}") for k in range(4)]
        for k in range(4):
            A.wait(toks[k])
            for e in range(4):
                A(f"v_add_f32 {v(aK + 4 * k + e)}, {v(aK + 4 * k + e)}, {v(rc + 4 * k + e)}")

    def stats_loads(self, sTile, dst, store, key):
        A = self.A
        items = [f"s_lshl_b32 s61, {s(sTile)}, 12\ns_add_u32 s61, s61, {WS_ST}"]
        for i in range(4):
            t = f"buffer_load_dwordx4 {v(dst + 4 * i, 4)}, {v(vT + 13)}, {WS}, s61 offen offset:{i * 512} sc1"
            items.append(lambda t=t: store.__setitem__(key, A(t)))
        return items

    def stats_reduce(self, src, out):
        L = []
        for k in range(1, 8):
            L += [f"v_add_f32 {v(src)}, {v(src)}, {v(src + 2 * k)}", f"v_add_f32 {v(src + 1)}, {v(src + 1)}, {v(src + 2 * k + 1)}"]
        L += [f"v_mov_b32 {v(src + 2)}, {v(src)}", f"v_mov_b32 {v(src + 3)}, {v(src + 1)}",
              f"v_permlane32_swap_b32 {v(src)}, {v(src + 2)}", f"v_permlane32_swap_b32 {v(src + 1)}, {v(src + 3)}",
              f"v_add_f32 {v(src)}, {v(src)}, {v(src + 2)}", f"v_add_f32 {v(src + 1)}, {v(src + 1)}, {v(src + 3)}",
              f"v_mul_f32 {v(out)}, s67, {v(src)}", f"v_mul_f32 {v(out + 1)}, s67, {v(src + 1)}"]
        return L

    def gu_reads(self, k):
        wf = 192 + 16 * (k & 1)
        grp, ks = k >> 2, k & 3
        hi = 4 if grp >= 4 else 0
        base = (grp & 3) * SLOT + ks * 2048
        return [f"ds_read_b64_tr_b16 {v(wf + 4 * cp + 2 * j, 2)}, {v(vGU + hi + cp)} offset:{base + j * 1024}" for cp in range(4) for j in range(2)]

    def gu_epilogue(self, acc, mean, sbase, state):
        A = self.A
        cs, L = 232, []
        for cp in range(4):
            a0 = acc + 16 * cp
            L += [f"s_xor_b32 s63, {s(sW)}, {cp}\ns_lshl_b32 s85, s63, 7", f"s_lshl_b32 s63, s63, 10\ns_add_u32 s86, s63, {s(sbase)}",
                  f"v_add_u32 {v(vT + 2)}, s85, {v(vT + 12)}"]
            for j in range(4):
                L.append(lambda j=j: state.__setitem__("ds", A(f"ds_read_b128 {v(cs + 4 * j, 4)}, {v(vT + 2)} offset:{j * 32}")))
            if cp:
                L += tail
            L.append(lambda: A.wait(state["ds"]))
            if self.opt.get("pk", 0):
                L += [f"v_pk_fma_f32 {v(a0 + r, 2)}, {v(mean, 2)}, {v(cs + r, 2)}, {v(a0 + r, 2)} op_sel_hi:[0,1,1] neg_lo:[1,0,0] neg_hi:[1,0,0]" for r in range(0, 16, 2)]
                tail = [f"v_pk_mul_f32 {v(a0 + r, 2)}, {v(a0 + r, 2)}, {v(a0 + 8 + r, 2)}" for r in range(0, 8, 2)]
            else:
                L += [f"v_fma_f32 {v(a0 + r)}, -{v(mean)}, {v(cs + r)}, {v(a0 + r)}" for r in range(16)]
                tail = [f"v_mul_f32 {v(a0 + r)}, {v(a0 + r)}, {v(a0 + 8 + r)}" for r in range(8)]
            tail += [f"v_cvt_pk_bf16_f32 {v(a0 + 8 + r)}, {v(a0 + 2 * r)}, {v(a0 + 2 * r + 1)}" for r in range(4)]
            sreg = 86 if cp == 3 else 75
            if cp < 3:
                L.append("s_mov_b32 s75, s86")
            tail.append(lambda a0=a0, sreg=sreg: state.__setitem__("st", A(f"buffer_store_dwordx4 {v(a0 + 8, 4)}, {v(vO16)}, {WS}, s{sreg} offen")))
        return L + tail

    def gu_setup(self):
        A = self.A
        sel = 228
        A(f"v_mov_b32 {v(vT + 2)}, {s(sT)}\nv_mov_b32 {v(vT + 3)}, {s(sTBB)}\nv_cmp_gt_u32 vcc, 32, {v(vL)}\nv_cndmask_b32 {v(vT + 2)}, {v(vT + 2)}, {v(vT + 3)}, vcc")
        A(f"v_mov_b32 {v(vT + 3)}, {s(sTA)}\nv_cmp_gt_u32 vcc, 16, {v(vL)}\nv_cndmask_b32 {v(vT + 2)}, {v(vT + 2)}, {v(vT + 3)}, vcc")
        A(f"v_lshl_add_u32 {v(vT + 2)}, {v(vT + 2)}, 7, {v(vT + 4)}\nv_add_u32 {v(vT + 5)}, {WS_HF}, {v(vT + 2)}")
        A(f"v_and_b32 {v(vT + 2)}, 31, {v(vL)}\nv_lshrrev_b32 {v(vT + 3)}, 5, {v(vL)}\nv_lshlrev_b32 {v(vT + 13)}, 4, {v(vT + 2)}")
        A(f"v_lshl_add_u32 {v(vT + 13)}, {v(vT + 3)}, 11, {v(vT + 13)}")
        A(f"v_lshlrev_b32 {v(vT + 12)}, 4, {v(vT + 3)}\nv_add_u32 {v(vT + 12)}, {RED}, {v(vT + 12)}")
        A(f"s_lshl_b32 s63, {s(sW)}, 7\ns_add_u32 s63, s63, {RED}\nv_lshl_add_u32 {v(vT + 9)}, {v(vT + 2)}, 2, s63")
        A(f"v_lshrrev_b32 {v(vT + 2)}, 2, {v(vL)}\nv_xor_b32 {v(vT + 2)}, {v(vT + 2)}, {v(vL)}\nv_bfe_u32 {v(vT + 2)}, {v(vT + 2)}, 2, 1")
        A(f"v_subrev_u32 {v(vT + 2)}, 1, {v(vT + 2)}\nv_and_b32 {v(sel)}, {ONES}, {v(vT + 2)}")
        for k in range(1, 4):
            A(f"v_mov_b32 {v(sel + k)}, {v(sel)}")
        A(f"v_min_u32 {v(vT + 2)}, 6, {v(vL)}\nv_lshlrev_b32 {v(vT + 2)}, 3, {v(vT + 2)}")
        A(f"s_lshl_b32 s63, {s(sT)}, 7\ns_add_u32 s63, s63, {WS_HHF}\ns_add_u32 s83, s83, s63\ns_add_u32 s84, s84, s63")
        A(f"v_add_u32 {v(vT + 7)}, s83, {v(vT + 2)}\nv_add_u32 {v(vT + 8)}, s84, {v(vT + 2)}")
        A(f"s_mul_i32 s63, {s(sT)}, 114688\ns_add_u32 s63, s63, {WS_HH}\ns_add_u32 s81, s81, s63\ns_add_u32 s82, s82, s63")
        for tile, sb, sf, sh in ((sTA, 87, 89, 94), (sTBB, 88, 90, 95)):
            A(f"s_mul_i32 s{sb}, {s(tile)}, 114688\ns_lshl_b32 s63, {s(sC)}, 12\ns_add_u32 s{sb}, s{sb}, s63\ns_add_u32 s{sb}, s{sb}, {WS_HH}")
            A(f"s_lshl_b32 s{sf}, {s(tile)}, 7\ns_lshl_b32 s63, {s(sC)}, 2\ns_add_u32 s{sf}, s{sf}, s63\ns_add_u32 s{sf}, s{sf}, {WS_HHF}")
            A(f"s_lshl_b32 s{sh}, {s(tile)}, 15\ns_add_u32 s{sh}, s{sh}, {WS_H}")

    def frag_stream(self, n, areg, sreg, setup, toks, early, dead):
        A = self.A
        out = []
        for k in range(n):
            t = f"buffer_load_dwordx4 {a_(areg + 4 * k, 4)}, {v(vO16)}, {WS}, s{sreg} offen offset:{(k & 3) * 1024} sc1"
            items = [setup(k >> 2)] if k % 4 == 0 else []
            items.append(lambda t=t, k=k: toks.__setitem__(k, A(t)))
            out.append([early, dead(k), items])
        return out

    @staticmethod
    def grp_units(items, early, dead):
        return [[early, dead, items[:2]]] + [[early, dead, [t]] for t in items[2:]]

    def vm_slot(self, pos, cycles):
        self.credit = min(self.credit + cycles / self.opt.get("pace", 68.0), 2.0)
        while self.credit >= 1.0:
            best = None
            for q in self.streams.values():
                if q and q[0][0] <= pos and (best is None or q[0][1] < best[0][1]):
                    best = q
            if best is None:
                return
            for it in best.pop(0)[2]:
                self.emit(it)
            self.credit -= 1.0

    def vm_force(self, name, toks, key, whole=False):
        q = self.streams[name]
        while key not in toks or (whole and q and q[0][3:] == [key]):
            for it in q.pop(0)[2]:
                self.emit(it)
        return toks[key]

    def gu(self):
        A = self.A
        o = self.opt
        accA, accB, csa, sel = 64, 128, 224, 228
        mA, mB, mD = 248, 250, 252
        self.poll(vT + 5)
        self.stamp("hpoll")
        A(f"s_cmp_ge_u32 {s(sC)}, 28\ns_cbranch_scc1 L_spare")
        h1, h2, self.he, self.hl, stt = {}, {}, {}, {}, {}
        INF, DN0 = 10 ** 6, 272
        rot = lambda base, reg: (lambda j: f"s_add_u32 s{reg}, {s(sG)}, {j}\ns_and_b32 s{reg}, s{reg}, 7\ns_lshl_b32 s{reg}, s{reg}, 12\ns_add_u32 s{reg}, s{reg}, s{base}")
        dma = []
        late = list(range(self.ngu, 8))
        for j in late:
            dma += [u + [("g", j)] for u in self.grp_units(self.gu_dma(j), 0, 16 * j - o.get("glead", 40))]
        for st in range(14):
            early = 0 if st == 0 else 128 + 16 * st if st < 8 else 256 if st == 8 else DN0 + 8 * (st - 8) + 4
            dma += [u + [("d", st)] for u in self.grp_units(self.dn_dma(st), early, DN0 + 8 * st - o.get("dlead", 30))]
        stats = []
        for n, tile in enumerate((sTA, sTBB, sT)):
            stats += self.grp_units(self.stats_loads(tile, accB + 16 * n, stt, n), 0, 60 + 12 * n)
        self.streams = {
            "h1": self.frag_stream(32, 0, 70, rot(94, 70), h1, 0, lambda k: 4 * k),
            "h2": self.frag_stream(32, 128, 71, rot(95, 71), h2, 0, lambda k: 128 + 4 * k),
            "dma": dma, "stats": stats,
            "pt": [[0, o.get("pt_at", 50), self.pthh]] if self.pthh else [],
            "he": self.frag_stream(28, 0, 70, lambda j: f"s_add_u32 s70, s81, {j * 8192}", self.he, INF, lambda k: DN0 + 2 * k),
            "hl": self.frag_stream(28, 128, 71, lambda j: f"s_add_u32 s71, s82, {j * 8192}", self.hl, INF, lambda k: DN0 + 56 + 2 * k),
        }
        self.credit = 0.0
        self.vm_force("h1", h1, o.get("h_burst", 8) - 1)
        A("s_barrier")
        rt = {}
        for n, t in enumerate(self.gu_reads(0)):
            rt[(0, n)] = A(t)
        split = (3, 3, 2, 0)
        state = {}

        def force_group(kind, idx, toks):
            q = self.streams["dma"]
            while any(u[3] == (kind, idx) for u in q):
                for it in q.pop(0)[2]:
                    self.emit(it)
            return toks[idx]
        self.force_group = force_group

        def kstep(kk, acc, hreg, htok, items, rate):
            k = kk & 31
            wf = 192 + 16 * (k & 1)
            nxt = self.gu_reads((k + 1) & 31) if kk < 63 else []
            n = 0
            for cp in range(4):
                if cp == 0:
                    A.wait(htok, rt[(kk, 3)])
                if cp == 2:
                    A.wait(rt[(kk, 7)])
                A(f"{MF32} {v(acc + 16 * cp, 16)}, {v(wf + 4 * cp, 4)}, {a_(hreg + 4 * k, 4)}, {v(acc + 16 * cp, 16) if k else '0'}")
                if cp == 0 and kk < 32:
                    A(f"{MF16} {v(csa, 4)}, {v(sel, 4)}, {v(wf, 4)}, {v(csa, 4) if k else '0'}")
                for _ in range(split[cp]):
                    if nxt:
                        rt[(kk + 1, n)] = A(nxt[n])
                        n += 1
                self.vm_slot(4 * kk + cp, 36 if kk < 32 else 32)
                for _ in range(rate[cp]):
                    if items:
                        self.emit(items.pop(0))

        items = []
        for k in range(32):
            if (k + 1) % 4 == 0 and (k + 1) // 4 in late:
                A.wait(force_group("g", (k + 1) // 4, self.gtok))
                A("s_barrier")
            if k == o.get("stat_k", 22):
                while self.streams["stats"]:
                    for it in self.streams["stats"].pop(0)[2]:
                        self.emit(it)
                for n, out in enumerate((mA, mB, mD)):
                    items += [lambda n=n: A.wait(stt[n])] + self.stats_reduce(accB + 16 * n, out)
            kstep(k, accA, 0, self.vm_force("h1", h1, k), items, (1, 1, 2, 4))
        for it in items:
            self.emit(it)
        self.stamp("gu1")
        cst = A(f"ds_write_b32 {v(vT + 9)}, {v(csa)}")
        items = self.gu_epilogue(accA, mA, 87, state)
        pub_k = None
        for k in range(32):
            if k % 4 == 0:
                if k == 0:
                    A.wait(cst)
                A("s_barrier")
            if not items and pub_k is None:
                pub_k = k + o.get("pub_lag", 2)
            if k == pub_k:
                self.publish([state["st"]], "s89")
            if pub_k is not None and k == pub_k + o.get("poll_lag", 3):
                ptok = self.poll_issue(vT + 7, vT + 10)
            if pub_k is not None and k == pub_k + o.get("poll_lag", 3) + o.get("chk_lag", 4):
                self.poll_check(ptok, vT + 7, vT + 10)
                self.stamp("hepoll")
                for u in self.streams["he"]:
                    u[0] = 0
            kstep(32 + k, accB, 128, self.vm_force("h2", h2, k), items if k else [], o.get("erate", (2, 2, 3, 4)))
        assert self.streams["he"] == [] or self.streams["he"][0][0] == 0
        self.stamp("gu2")
        A("s_barrier")
        items = self.gu_epilogue(accB, mB, 88, state)
        for n, it in enumerate(items):
            self.emit(it)
            self.vm_slot(256, 4.5)
        while self.streams["he"]:
            for it in self.streams["he"].pop(0)[2]:
                self.emit(it)
        force_group("d", 8, self.dntok)
        self.publish([state["st"]], "s90")
        self.stamp("gupub")
        A.label("L_down")

    def spare(self):
        A = self.A
        A.label("L_spare")
        ln = self.lab("ne")
        A(f"s_cmp_lg_u32 s2, 248\ns_cbranch_scc1 {ln}\ns_cmp_lg_u32 {s(sW)}, 0\ns_cbranch_scc1 {ln}")
        for q in range(4):
            A(f"v_lshlrev_b32 {v(vT + 2)}, 2, {v(vL)}\nv_add_u32 {v(vT + 2)}, {WS_TAB + 256 * q}, {v(vT + 2)}")
            self.poll(vT + 2, acquire=False)
        A(f"s_mov_b32 s63, {WS_E}")
        A(f"buffer_store_dword {v(vTAG)}, off, {WS}, s63 sc1")
        A.label(ln)
        stt = {}
        for it in self.stats_loads(sT, 232, stt, 0):
            self.emit(it)
        if self.opt.get("spare_pf", 1):
            A(f"s_and_b32 s63, {s(sC)}, 3\ns_lshl_b32 s63, s63, 2\ns_add_u32 s63, s63, {s(sW)}")
            A(f"s_and_b32 s73, s63, 7\ns_lshl_b32 s73, s73, 13\ns_lshr_b32 s63, s63, 3\ns_mul_i32 s63, s63, {14 * 65536}\ns_add_u32 s73, s73, s63")
            A(f"v_lshlrev_b32 {v(vT + 2)}, 7, {v(vL)}")
            for n in range(14):
                A(f"buffer_load_dword {v(vJ)}, {v(vT + 2)}, {WD}, s73 offen\ns_add_u32 s73, s73, 65536")
        for st in range(9):
            for it in self.dn_dma(st):
                self.emit(it)
        A.wait(stt[0])
        for t in self.stats_reduce(232, 252):
            A(t)
        self.poll(vT + 7)
        for n in range(28):
            if n % 4 == 0:
                A(f"s_add_u32 s70, s81, {(n // 4) * 8192}")
            A(f"buffer_load_dwordx4 {a_(4 * n, 4)}, {v(vO16)}, {WS}, s70 offen offset:{(n & 3) * 1024} sc1")
        A("s_waitcnt vmcnt(0)\ns_branch L_down")

    def dn_reads(self, k):
        wf = 192 + 8 * (k & 3)
        st, ks = k >> 2, k & 3
        slot = (8 + st) % 9
        rng = slot >> 2
        base = (slot & 3) * SLOT + ks * 2048
        return [f"ds_read_b64_tr_b16 {v(wf + 4 * ct + 2 * j, 2)}, {v(vDN + 2 * rng + ct)} offset:{base + j * 1024}" for ct in range(2) for j in range(2)]

    def down(self):
        A = self.A
        o = self.opt
        aK, aS, rc, mD, DN0 = 64, 80, 96, 252, 272
        A.wait(self.dntok[0])
        A("s_barrier")
        seen = max(st for st in range(9) if A.covered(self.dntok[st]))
        rt = {}
        for k in range(2):
            for t in self.dn_reads(k):
                rt[k] = A(t)
        lp, lc = o.get("late_issue", 6), o.get("late_check", 12)
        for k in range(56):
            st, ks = k >> 2, k & 3
            wf = 192 + 8 * (k & 3)
            if ks == 2 and st + 1 < 14:
                if st + 1 > seen:
                    A.wait(self.force_group("d", st + 1, self.dntok))
                if st + 1 > seen or (st >= 1 and st + 8 < 14):
                    A("s_barrier")
                    seen = max(x for x in self.dntok if A.covered(self.dntok[x]) and not any(u[3] == ("d", x) for u in self.streams["dma"]))
            if k == lp:
                ptok = self.poll_issue(vT + 8, vT + 10)
            if k == lc:
                self.poll_check(ptok, vT + 8, vT + 10)
                self.stamp("hlpoll")
                for u in self.streams["hl"]:
                    u[0] = 0
            nxt = self.dn_reads(k + 2) if k + 2 < 56 else None
            hf = a_(4 * k, 4) if k < 28 else a_(128 + 4 * (k - 28), 4)
            A.wait(rt[k], self.he[k] if k < 28 else self.vm_force("hl", self.hl, k - 28))
            for ct, acc in ((1, aS), (0, aK)):
                A(f"{MF32} {v(acc, 16)}, {v(wf + 4 * ct, 4)}, {hf}, {v(acc, 16) if k else '0'}")
                if nxt:
                    A(nxt[2 * ct])
                    rt[k + 2] = A(nxt[2 * ct + 1])
                self.vm_slot(DN0 + 2 * k + 1 - ct, o.get("dn_cyc", 40))
        self.stamp("dnmm")
        A(f"v_fma_f32 {v(mD + 1)}, -{v(mD)}, {v(mD)}, {v(mD + 1)}\nv_max_f32 {v(mD + 1)}, 0, {v(mD + 1)}\nv_add_f32 {v(mD + 1)}, s68, {v(mD + 1)}")
        A(f"v_rcp_f32 {v(mD + 1)}, {v(mD + 1)}")
        A(f"v_and_b32 {v(vT + 2)}, 31, {v(vL)}\nv_lshrrev_b32 {v(vT + 3)}, 5, {v(vL)}\nv_lshlrev_b32 {v(vT + 2)}, 10, {v(vT + 2)}\nv_lshl_add_u32 {v(vT + 2)}, {v(vT + 3)}, 4, {v(vT + 2)}")
        self.reduce_pair(aK, aS, rc)
        for k in range(16):
            A(f"v_fma_f32 {v(aK + k)}, {v(aK + k)}, {v(mD + 1)}, {v(vH + k)}")
        pk = 112
        for k in range(8):
            A(f"v_cvt_pk_bf16_f32 {v(pk + k)}, {v(aK + 2 * k)}, {v(aK + 2 * k + 1)}")
        for hh in range(2):
            A(f"v_permlane32_swap_b32 {v(pk + 4 * hh)}, {v(pk + 4 * hh + 2)}\nv_permlane32_swap_b32 {v(pk + 4 * hh + 1)}, {v(pk + 4 * hh + 3)}")
        for hh in range(2):
            A(f"buffer_store_dwordx4 {v(pk + 4 * hh, 4)}, {v(vT + 2)}, {OUT}, s20 offen offset:{hh * 32} sc1")
        self.stamp("end")

    def build(self):
        A = self.A
        k = NAME + "_kernel"
        self.prologue()
        self.ln1()
        self.qkv()
        self.attention()
        self.wo()
        self.gu()
        self.down()
        self.finish_kernel()
        self.spare()
        self.emit_tail()
        A.label("L_exit")
        A("s_endpgm")
        body = A.finish(verbose=self.opt.get("verbose", False))
        ref = open(f"cdna_kernels/{NAME}.s.ref").read().split("\n") if not self.listform else []
        head = [ln for ln in ref if ln.startswith(";") and "@launch" not in ln and "Override" not in ln and "grid=ceil" not in ln]
        launch = f"; @launch {'kernel=' + k + ' ' if self.listform else ''}grid=(256,1,1) block=(256,1,1) lds=163840"
        return "\n".join(head + [launch, '.amdgcn_target "amdgcn-amd-amdhsa--gfx950"', ".text", f".globl {k}", ".p2align 8",
                                 f".type {k},@function", f"{k}:", body,
                                 "; padding: the text prefetch at entry reads 33 KiB from the kernel start",
                                 f".fill {self.opt.get('padw', 1024)}, 4, 0xbf800000",
                                 '.section .rodata,"a"', ".p2align 6", f".amdhsa_kernel {k}",
                                 "  .amdhsa_next_free_vgpr 512", "  .amdhsa_next_free_sgpr 102", "  .amdhsa_accum_offset 256",
                                 "  .amdhsa_group_segment_fixed_size 0", "  .amdhsa_kernarg_size 80", "  .amdhsa_user_sgpr_count 2",
                                 "  .amdhsa_user_sgpr_kernarg_segment_ptr 1", "  .amdhsa_system_sgpr_workgroup_id_x 1",
                                 ".end_amdhsa_kernel", ""])


if __name__ == "__main__":
    g = Gen(opt={"verbose": "-v" in sys.argv})
    txt = g.build()
    out = f"cdna_kernels/{NAME}.s"
    open(out, "w").write(txt)
    print("wrote", out, len(txt), "bytes; hazard pad states", g.A.pad_states)
```

```python
import sys
from asmlib import Asm

NAME = "sequential_preLN__sliding_block__glu_gated_bilinear__prompt"

WS_E, WS_KVF, WS_OF, WS_HF, WS_HHF = 0x0, 0x60000, 0x2000, 0x3000, 0x5000
WS_ST, WS_KV, WS_O, WS_H, WS_HH, WS_DBG = 0x10000, 0x100000, 0x500000, 0x700000, 0x900000, 0x1000000
WS_SIZE = 0x1000000
TAG_STEP = 0x9E3779B0
SLOT = 16384
XB = 5 * SLOT
XROW = 1040
XKV, XQ = 2 * SLOT, 9 * SLOT + 8192
CONST, MTAB = 149504, 150016
RED = 9 * SLOT
ONES = 0x3F803F80
NEG = 0xFF800000
SPIN_MAX = 1 << 18

sW, sG, sC, sTB, sHQ, sB, sTAG, sFAST, sTT, sHP = 3, 4, 5, 6, 7, 8, 9, 10, 11, 12
sW4K, sENT, sT = 13, 14, 15
sPAR, sTA, sTBB, sE = 16, 17, 18, 19
X, WQ, WO, WGU, WD, OUT, WS = "s[24:27]", "s[28:31]", "s[32:35]", "s[36:39]", "s[40:43]", "s[44:47]", "s[48:51]"
vL, vO16 = 0, 1
vD3072, vD3584, vD1024 = 2, 6, 10
vXA, vWA = 14, 15
vGU = 17
vDN = 25
vST = 31
vH = 32
vTAG, vJ = 48, 49
vT = 50


def v(a, n=1):
    return f"v{a}" if n == 1 else f"v[{a}:{a + n - 1}]"


def a_(a, n=1):
    return f"a{a}" if n == 1 else f"a[{a}:{a + n - 1}]"


def s(a, n=1):
    return f"s{a}" if n == 1 else f"s[{a}:{a + n - 1}]"


def r_from(J):
    return max(J // 4 - 1, 0)


MF32 = "v_mfma_f32_32x32x16_bf16"
MF16 = "v_mfma_f32_16x16x32_bf16"


class Gen:
    def __init__(self, stamps=False, stop=None, listform=False, force_slow=False, force_fb=False, opt=None):
        self.A = Asm()
        self.stamps, self.stop, self.listform = stamps, stop, listform
        self.force_slow, self.force_fb = force_slow, force_fb
        self.opt = opt or {}
        self.nlab = 0
        self.stamp_names = []
        self.tail = []
        self.m0_owner = None
        self.priv = self.opt.get('priv', 0)
        self.wr = self.opt.get('wr', 0)
        self.ohs = ' sc1' if self.opt.get('oh_sc1', 1) and not self.priv and not self.wr else ''

    def lab(self, p):
        self.nlab += 1
        return f"L_{p}{self.nlab}"

    def stamp(self, name, fine=None):
        if self.opt.get("probe") == name:
            self.A("s_memrealtime s[92:93]\ns_waitcnt lgkmcnt(0)")
        if not self.stamps:
            return
        want = self.opt.get("fine")
        if fine is not None and fine != want:
            return
        if fine is None and want and name not in self.opt.get("keep", ("ln1", "kvst", "attn", "hpoll", "gu1", "gu2", "gupub", "dnmm", "end")):
            return
        i = len(self.stamp_names)
        self.stamp_names.append(name)
        self.A(f"s_memtime s[78:79]\ns_memrealtime s[92:93]\ns_waitcnt lgkmcnt(0)\nv_writelane_b32 {v(vST)}, s78, {i}\nv_writelane_b32 {v(vST)}, s92, {i + 30}")

    def dma4(self, vbase, srd, soff, slot):
        A = self.A
        A(f"s_add_u32 m0, {s(sW4K)}, {slot * SLOT}")
        return [f"buffer_load_dwordx4 {v(vbase + i)}, {srd}, {soff} offen offset:{i * 1024} lds" for i in range(4)]

    def publish(self, toks, soff):
        A = self.A
        lf, ld = self.lab("pf"), self.lab("pd")
        A.wait(*toks)
        A(f"s_cmp_lg_u32 {s(sFAST)}, 0\ns_cbranch_scc1 {lf}")
        A.raw("buffer_wbl2 sc1")
        A.raw("s_waitcnt vmcnt(0)")
        A.raw(f"buffer_store_dword {v(vTAG)}, off, {WS}, {soff} sc1")
        A(f"s_branch {ld}")
        A.label(lf)
        A(f"buffer_store_dword {v(vTAG)}, off, {WS}, {soff}")
        A.label(ld)

    def poll(self, vaddr, acquire=True):
        A = self.A
        lp, ld = self.lab("poll"), self.lab("pollx")
        A("s_mov_b32 s60, 0")
        A.label(lp)
        A(f"buffer_load_dword {v(vT)}, {v(vaddr)}, {WS}, 0 offen sc1")
        A(f"s_add_u32 s60, s60, 1\ns_cmp_gt_u32 s60, {SPIN_MAX}\ns_waitcnt vmcnt(0)\ns_cbranch_scc1 {ld}")
        A(f"v_xor_b32 {v(vT + 1)}, {v(vT)}, {v(vTAG)}\nv_cmp_lt_u32 vcc, 15, {v(vT + 1)}\ns_cbranch_vccnz {lp}")
        A.label(ld)
        if acquire:
            self.acquire()

    def poll_issue(self, vaddr, dst):
        return self.A(f"buffer_load_dword {v(dst)}, {v(vaddr)}, {WS}, 0 offen sc1")

    def poll_check(self, tok, vaddr, dst):
        A = self.A
        ls, lb = self.lab("spin"), self.lab("back")
        A.wait(tok)
        A(f"v_xor_b32 {v(dst)}, {v(dst)}, {v(vTAG)}\nv_cmp_lt_u32 vcc, 15, {v(dst)}")
        A(f"s_cmp_eq_u32 {s(sFAST)}, 0\ns_cbranch_scc1 {ls}\ns_cbranch_vccnz {ls}")
        A.label(lb)
        self.tail.append((ls, lb, vaddr, None))

    def emit_tail(self):
        for ls, lb, vaddr, keep in self.tail:
            self.A.label(ls)
            self.poll(vaddr, acquire=keep is None)
            if keep is not None:
                self.A(f"v_mov_b32 {v(keep)}, {v(vT)}")
            self.A(f"s_branch {lb}")

    def acquire(self):
        A = self.A
        lf = self.lab("aq")
        A(f"s_cmp_lg_u32 {s(sFAST)}, 0\ns_cbranch_scc1 {lf}")
        A.raw("buffer_inv sc1")
        A.raw("s_waitcnt vmcnt(0)")
        A.label(lf)

    def finish_kernel(self):
        A = self.A
        if self.stamps:
            A("s_memrealtime s[78:79]\ns_waitcnt lgkmcnt(0)")
            A(f"v_writelane_b32 {v(vST)}, s78, 63\nv_writelane_b32 {v(vST)}, s76, 62\nv_writelane_b32 {v(vST)}, {s(sFAST)}, 61")
            A(f"s_lshl_b32 s60, s2, 2\ns_add_u32 s60, s60, {s(sW)}\ns_lshl_b32 s60, s60, 8\ns_add_u32 s60, s60, {WS_DBG}")
            A(f"v_lshlrev_b32 {v(vT)}, 2, {v(vL)}")
            A(f"buffer_store_dword {v(vST)}, {v(vT)}, {WS}, s60 offen sc1")
        if self.opt.get("probe"):
            A("s_waitcnt vmcnt(0)\ns_sub_u32 s92, s92, s76\ns_lshl_b32 s92, s92, 2\ns_add_u32 s92, s92, 4000")
            A.label("L_cal")
            A("s_memrealtime s[78:79]\ns_waitcnt lgkmcnt(0)\ns_sub_u32 s78, s78, s76\ns_cmp_lt_u32 s78, s92\ns_cbranch_scc1 L_cal")
        A("s_endpgm")

    def prologue(self):
        A = self.A
        o = self.opt
        t0, t1, t2, t3 = vT, vT + 1, vT + 2, vT + 3
        A("s_load_dwordx2 s[24:25], s[0:1], 0\ns_load_dwordx2 s[28:29], s[0:1], 8\ns_load_dwordx2 s[32:33], s[0:1], 16")
        if self.stamps:
            A("s_memrealtime s[76:77]\ns_memtime s[92:93]")
        if o.get("probe"):
            A("s_memrealtime s[76:77]\ns_memrealtime s[92:93]")
        A("s_cmp_ge_u32 s2, 256\ns_cbranch_scc1 L_exit")
        A(f"s_getpc_b64 s[60:61]\ns_lshr_b32 {s(sC)}, s2, 3\nv_min_u32 {v(t1)}, 9, v0\ns_mul_i32 s62, {s(sC)}, 1280")
        A(f"v_lshl_add_u32 {v(t1)}, {v(t1)}, 7, s62\nv_lshrrev_b32 {v(t0)}, 6, v0")
        A(f"global_load_dword {v(vJ)}, {v(t1)}, s[60:61]")
        A(f"v_readfirstlane_b32 {s(sW)}, {v(t0)}\nv_and_b32 {v(vL)}, 63, v0")
        A(f"s_and_b32 {s(sG)}, s2, 7\ns_and_b32 {s(sTB)}, {s(sC)}, 3\ns_lshr_b32 {s(sHQ)}, {s(sC)}, 2\ns_xor_b32 {s(sHQ)}, {s(sHQ)}, {o.get('hqx', 4)}")
        A(f"s_lshl2_add_u32 {s(sB)}, {s(sG)}, {s(sTB)}\ns_lshl2_add_u32 s62, {s(sB)}, {s(sW)}\ns_lshl_b32 s62, s62, 14")
        A(f"s_lshl_b32 s94, {s(sHQ)}, 7\ns_or_b32 s62, s62, s94")
        A(f"v_lshrrev_b32 {v(t0)}, 3, {v(vL)}\nv_and_b32 {v(t1)}, 7, {v(vL)}")
        A(f"v_lshlrev_b32 {v(t2)}, 10, {v(t0)}\nv_lshl_add_u32 {v(vT + 4)}, {v(t1)}, 4, {v(t2)}\nv_add_u32 {v(vT + 5)}, 8192, {v(vT + 4)}")
        A(f"s_mov_b32 s26, {2048 * 1024}\ns_mov_b32 s27, 0x20000")
        A(f"s_lshl2_add_u32 s95, s2, {s(sW)}\nv_lshlrev_b32 {v(vT + 9)}, 7, {v(vL)}")
        A("s_waitcnt lgkmcnt(0)")
        self.xtok = []
        self.xload(0)
        self.xload(1)
        nx = o.get("nx0", 10)
        for i in range(2, nx):
            self.xload(i)
        A("s_load_dwordx2 s[48:49], s[0:1], 72\ns_load_dwordx4 s[52:55], s[0:1], 32\ns_load_dwordx4 s[56:59], s[0:1], 48")
        if self.stamps:
            self.stamp_names.append("start")
            A(f"v_mov_b32 {v(vST)}, 0")
            A(f"v_writelane_b32 {v(vST)}, s92, 0\nv_writelane_b32 {v(vST)}, s76, 30")
            self.stamp("karg")
        A(f"s_and_b32 {s(sTT)}, {s(sW)}, 1\ns_lshr_b32 {s(sHP)}, {s(sW)}, 1\ns_lshl_b32 {s(sW4K)}, {s(sW)}, 12")
        A(f"s_lshl1_add_u32 {s(sT)}, {s(sB)}, {s(sTT)}")
        r1 = o.get("rot_s1", "g")
        A({"tb": f"s_lshl_b32 s96, {s(sTB)}, 1", "g": f"s_mov_b32 s96, {s(sG)}", "gt": f"s_and_b32 s96, {s(sTB)}, 1\ns_xor_b32 s96, s96, {s(sG)}"}[r1])
        A("s_lshr_b32 s85, s96, 1")
        for srd, size in ((28, 512 * 3072), (32, 512 * 1024), (40, 1792 * 1024), (44, 2048 * 1024),
                          (48, WS_SIZE + (0x100000 if self.stamps else 0))):
            A(f"s_mov_b32 s{srd + 2}, {size}\ns_mov_b32 s{srd + 3}, 0x20000")
        A("s_mov_b32 s39, 0x20000")
        A(f"v_lshlrev_b32 {v(vO16)}, 4, {v(vL)}")
        A(f"v_lshrrev_b32 {v(t2)}, 2, {v(vL)}\nv_and_b32 {v(t2)}, 4, {v(t2)}\nv_xor_b32 {v(t2)}, {v(t2)}, {v(t1)}\nv_lshlrev_b32 {v(t2)}, 4, {v(t2)}")
        A(f"v_mul_u32_u24 {v(t3)}, 3072, {v(t0)}\nv_add_u32 {v(vD3072)}, {v(t3)}, {v(t2)}")
        for i in range(1, 4):
            A(f"v_add_u32 {v(vD3072 + i)}, {i * (8 * 3072 - 1024)}, {v(vD3072)}")
        A(f"s_mul_i32 s64, {s(sTT)}, {32 * 3072}\ns_lshl_b32 s63, {s(sHP)}, 10\ns_add_u32 s64, s64, s63")
        A(f"s_add_u32 s64, s64, s94\ns_add_u32 s64, s64, 1024")
        A(f"s_and_b32 s65, s96, 1\ns_lshl_b32 s65, s65, 1\ns_xor_b32 s65, s65, {s(sW)}\ns_mul_i32 s65, s65, {32 * 3072}\ns_add_u32 s65, s65, s94")
        self.dtok = {}
        A("s_waitcnt lgkmcnt(0)")
        A(f"s_load_dword {s(sTAG)}, s[48:49], {WS_E}")
        A(f"s_mov_b32 s40, s56\ns_mov_b32 s41, s57\ns_mov_b32 s44, s58\ns_mov_b32 s45, s59")
        A(f"s_cmp_eq_u32 {s(sHP)}, 0\ns_cselect_b32 s36, s52, s54\ns_cselect_b32 s37, s53, s55")
        A(f"s_cmp_lt_u32 {s(sC)}, 28\ns_cselect_b32 s38, {512 * 3584}, 0")
        A(f"v_lshlrev_b32 {v(t3)}, 10, {v(t0)}\nv_add_u32 {v(vD1024)}, {v(t3)}, {v(t2)}")
        A(f"s_lshl_b32 s63, {s(sHP)}, 5\nv_xor_b32 {v(t2)}, s63, {v(t2)}")
        A(f"v_mul_u32_u24 {v(t3)}, 3584, {v(t0)}\nv_add_u32 {v(vD3584)}, {v(t3)}, {v(t2)}")
        A(f"s_mul_i32 s63, {s(sW)}, {16 * XROW}\ns_add_u32 s63, s63, {XB}")
        A(f"v_mul_u32_u24 {v(t3)}, {XROW}, {v(t0)}\nv_lshl_add_u32 {v(t3)}, {v(t1)}, 4, {v(t3)}\nv_add_u32 {v(vT + 6)}, s63, {v(t3)}")
        for i in range(8):
            A(f"s_xor_b32 s63, s94, {i << 7}\nv_add_u32 {v(200 + i)}, s63, {v(vT + 6)}")
        A(f"v_and_b32 {v(t0)}, 31, {v(vL)}\nv_lshrrev_b32 {v(t1)}, 5, {v(vL)}")
        A(f"s_mul_i32 s63, {s(sTT)}, {32 * XROW}\ns_add_u32 s63, s63, {XB}")
        A(f"v_mul_u32_u24 {v(t3)}, {XROW}, {v(t0)}\nv_lshl_add_u32 {v(t3)}, {v(t1)}, 4, {v(t3)}\nv_add_u32 {v(vXA)}, s63, {v(t3)}")
        r_, pc = vT + 7, vT + 8
        A(f"v_bfe_u32 {v(r_)}, {v(vL)}, 2, 2")
        A(f"v_and_b32 {v(t0)}, 3, {v(vL)}\nv_lshlrev_b32 {v(pc)}, 3, {v(t0)}")
        A(f"v_and_b32 {v(t0)}, 8, {v(vL)}\nv_lshl_add_u32 {v(pc)}, {v(t0)}, 3, {v(pc)}")
        A(f"v_and_b32 {v(t0)}, 16, {v(vL)}\nv_lshl_add_u32 {v(pc)}, {v(t0)}, 1, {v(pc)}")
        A(f"s_lshl_b32 s63, {s(sHP)}, 6\nv_xor_b32 {v(t2)}, s63, {v(pc)}")
        A(f"v_lshl_add_u32 {v(t3)}, {v(t1)}, 3, {v(r_)}\nv_lshl_add_u32 {v(vWA)}, {v(t3)}, 7, {v(t2)}")
        A(f"v_add_u32 {v(vWA + 1)}, 0x10000, {v(vWA)}")
        L = []
        for i in range(1, 4):
            L += [f"v_add_u32 {v(vD1024 + i)}, {i * (8 * 1024 - 1024)}, {v(vD1024)}", f"v_add_u32 {v(vD3584 + i)}, {i * (8 * 3584 - 1024)}, {v(vD3584)}"]
        L += [f"v_lshl_add_u32 {v(t3)}, {v(t1)}, 2, {v(r_)}", f"v_lshlrev_b32 {v(t3)}, 7, {v(t3)}",
              f"s_lshl_b32 s69, {s(sHP)}, 13", f"v_add3_u32 {v(vDN)}, {v(t3)}, {v(t2)}, s69", f"v_xor_b32 {v(vDN + 1)}, 64, {v(vDN)}"]
        for k in (1, 2):
            L += [f"v_add_u32 {v(vDN + 2 * k)}, {k * 0x10000}, {v(vDN)}", f"v_add_u32 {v(vDN + 2 * k + 1)}, {k * 0x10000}, {v(vDN + 1)}"]
        L += [f"v_lshl_add_u32 {v(t3)}, {v(t0)}, 9, {v(t3)}"]
        for cp in range(4):
            L += [f"s_xor_b32 s69, {s(sW)}, {cp}", "s_lshl_b32 s69, s69, 5", f"v_xor_b32 {v(t2)}, s69, {v(pc)}",
                  f"v_add_u32 {v(vGU + cp)}, {v(t3)}, {v(t2)}", f"v_add_u32 {v(vGU + 4 + cp)}, 0x10000, {v(vGU + cp)}"]
        self.late_setup = L
        st = {}
        L = [f"v_bfe_u32 v147, {v(vL)}, 2, 1", f"v_and_b32 v150, 7, {v(vL)}", "v_subrev_u32 v147, 1, v147", "v_lshlrev_b32 v150, 2, v150",
             f"v_and_b32 v147, {ONES}, v147", f"v_add_u32 v150, {CONST}, v150",
             lambda: st.__setitem__(0, A("ds_write_b32 v150, v147")), f"v_mov_b32 v147, {CONST}", lambda: A.wait(st[0])]
        for j in (8, 9, 0, 1, 2, 3, 4, 5, 6, 7):
            if j < 8 and j % 2 == 0:
                L += [f"s_cmp_ge_u32 {s(sB)}, {4 - j // 2}\ns_cselect_b32 s75, 0, 16", f"s_add_u32 s75, s75, {CONST}", "v_mov_b32 v147, s75"]
            L += [f"ds_read_b128 {a_(128 + 12 * j + 4 + 4 * k, 4)}, v147" for k in range(2)]
        self.prefill = L

        def touches():
            if o.get("touch0", 2):
                A(f"s_mul_i32 s63, s95, 1536\nv_add_u32 v208, s63, {v(vT + 9)}\ns_lshl_b32 s63, s95, 9\nv_add_u32 v209, s63, {v(vT + 9)}")
                p3 = o.get("touch3", 1)
                if p3:
                    A(f"s_lshl2_add_u32 s61, {s(sC)}, {s(sW)}\ns_mul_i32 s63, s61, 12288\ns_sub_u32 s63, s63, {32768 - 384}\ns_mov_b32 exec_lo, 0")
                    A(f"v_lshl_add_u32 v208, {v(vL)}, 10, s63\ns_lshl_b32 s63, s61, 12\ns_sub_u32 s63, s63, {32768 - 384}\nv_lshl_add_u32 v209, {v(vL)}, 10, s63")
                A(f"s_mov_b32 exec_lo, {0xfff if o.get('touch0', 2) == 1 else 0}\ns_mov_b32 exec_hi, {0xfff * p3}\nglobal_load_dword {v(vJ)}, v208, s[28:29]")
                A(f"s_mov_b32 exec_lo, 15\ns_mov_b32 exec_hi, {15 * p3}\nglobal_load_dword {v(vJ)}, v209, s[32:33]\ns_mov_b64 exec, -1")
        self.pending = [(lambda i=i: self.xload(i)) for i in range(nx, 16)] + [touches]

    def xload(self, i):
        A = self.A
        if i % 2 == 0:
            A(f"s_xor_b32 s70, s62, {(i >> 1) << 7}")
        self.xtok.append(A(f"buffer_load_dwordx4 {v(68 + 8 * i, 4)}, {v(vT + 4 + (i & 1))}, {X}, s70 offen"))

    def grp(self, setup, vbase, srd, store, key):
        A = self.A
        items = [setup]
        for i in range(4):
            t = f"buffer_load_dwordx4 {v(vbase + i)}, {srd}, s91 offen offset:{i * 1024} lds"
            items.append(lambda t=t, i=i: store.__setitem__(key if i == 3 else ("part", key), A(t)))
        return items

    def grp2(self, slot, setup, sreg, vbase, srd, store, key):
        A = self.A

        def load(i):
            if self.m0_owner != (sreg, key):
                A(f"s_add_u32 m0, {s(sW4K)}, {slot * SLOT}")
                self.m0_owner = (sreg, key)
            store[key if i == 3 else ("part", key)] = A(f"buffer_load_dwordx4 {v(vbase + i)}, {srd}, s{sreg} offen offset:{i * 1024} lds")
        return [setup] + [(lambda i=i: load(i)) for i in range(4)]

    def emit(self, it):
        if callable(it):
            it()
        else:
            self.A(it)

    def s1_dma(self, n):
        m0 = f"s_add_u32 m0, {s(sW4K)}, {(n % 5) * SLOT}\n"
        if n < 8:
            su = f"s_xor_b32 s91, s96, {n}\ns_mul_i32 s91, s91, {64 * 3072}\ns_add_u32 s91, s91, s64"
        else:
            su = f"s_xor_b32 s91, s85, {n - 8}\ns_mul_i32 s91, s91, {128 * 3072}\ns_add_u32 s91, s91, s65"
        return self.grp(m0 + su, vD3072, WQ, self.dtok, n)

    def wo_dma(self, i):
        if not self.opt.get("rot_wo", 0):
            return self.grp(f"s_add_u32 m0, {s(sW4K)}, {(5 + i) * SLOT}\ns_add_u32 s91, s21, {i << 17}", vD1024, WO, self.dtok, "wo")
        su = (f"s_xor_b32 s91, {s(sTB)}, {i}\ns_lshl_b32 s61, s91, 14\ns_add_u32 s61, s61, {5 * SLOT}\n"
              f"s_add_u32 m0, {s(sW4K)}, s61\ns_lshl_b32 s91, s91, 17\ns_add_u32 s91, s91, s21")
        return self.grp(su, vD1024, WO, self.dtok, "wo")

    def ln1(self):
        A = self.A
        acc = 192
        for k in range(8):
            A(f"v_mov_b32 {v(acc + k)}, 0")
        A("s_mov_b32 s66, 0xffff0000")
        side = sum((self.s1_dma(n) for n in range(5)), [])
        for i in range(16):
            b = 64 + 8 * i
            su, sq = acc + 4 * (i & 1), acc + 4 * (i & 1) + 2
            A.wait(self.xtok[i])
            if i == 0:
                self.stamp("x0")
            if self.pending:
                for _ in range(self.opt.get("pend_rate", 2)):
                    if self.pending:
                        self.pending.pop(0)()
            elif len(side) > 25 - 5 * self.opt.get("w_stats", 2):
                if not callable(side[0]):
                    self.emit(side.pop(0))
                self.emit(side.pop(0))
            for d in range(4):
                A(f"v_lshlrev_b32 {v(b + 2 * d)}, 16, {v(b + 4 + d)}\nv_and_b32 {v(b + 2 * d + 1)}, s66, {v(b + 4 + d)}")
                A(f"v_pk_add_f32 {v(su, 2)}, {v(su, 2)}, {v(b + 2 * d, 2)}")
                A(f"v_pk_fma_f32 {v(sq, 2)}, {v(b + 2 * d, 2)}, {v(b + 2 * d, 2)}, {v(sq, 2)}")
        self.stamp("xall")
        for k in range(4):
            A(f"v_add_f32 {v(acc + 2 * k)}, {v(acc + 2 * k)}, {v(acc + 2 * k + 1)}")
        for pat in ("quad_perm:[1,0,3,2]", "quad_perm:[2,3,0,1]", "row_half_mirror"):
            for k in range(4):
                A(f"v_add_f32_dpp {v(acc + 2 * k)}, {v(acc + 2 * k)}, {v(acc + 2 * k)} {pat} row_mask:0xf bank_mask:0xf")
        A("s_mov_b32 s67, 0x3b000000\ns_mov_b32 s68, 0x3727c5ac")
        for k in (0, 4):
            A(f"v_mul_f32 {v(acc + k)}, s67, {v(acc + k)}\nv_mul_f32 {v(acc + k + 2)}, s67, {v(acc + k + 2)}")
        for k in (0, 4):
            A(f"v_fma_f32 {v(acc + k + 2)}, -{v(acc + k)}, {v(acc + k)}, {v(acc + k + 2)}")
        for k in (0, 4):
            A(f"v_max_f32 {v(acc + k + 2)}, 0, {v(acc + k + 2)}\nv_add_f32 {v(acc + k + 2)}, s68, {v(acc + k + 2)}")
        for k in (0, 4):
            A(f"v_rsq_f32 {v(acc + k + 2)}, {v(acc + k + 2)}")
        for k in (0, 4):
            A(f"v_mul_f32 {v(acc + k)}, -{v(acc + k)}, {v(acc + k + 2)}")
        A("s_waitcnt lgkmcnt(0)")
        A(f"s_add_u32 {s(sTAG)}, {s(sTAG)}, {TAG_STEP}\ns_and_b32 {s(sTAG)}, {s(sTAG)}, 0xfffffff0")
        A(f"s_getreg_b32 {s(sENT)}, hwreg(HW_REG_XCC_ID)\ns_and_b32 {s(sENT)}, {s(sENT)}, 15\ns_or_b32 {s(sENT)}, {s(sENT)}, {s(sTAG)}")
        A(f"v_mov_b32 {v(vTAG)}, {s(sTAG)}")
        for i in range(16):
            b = 64 + 8 * i
            nb, rs = acc + 4 * (i & 1), acc + 4 * (i & 1) + 2
            for d in range(4):
                A(f"v_pk_fma_f32 {v(b + 2 * d, 2)}, {v(b + 2 * d, 2)}, {v(rs, 2)}, {v(nb, 2)} op_sel_hi:[1,0,0]")
            for d in range(4):
                A(f"v_cvt_pk_bf16_f32 {v(b + d)}, {v(b + 2 * d)}, {v(b + 2 * d + 1)}")
            A(f"ds_write_b128 {v(200 + (i >> 1))}, {v(b, 4)} offset:{(i & 1) * 8 * XROW}")
            if side and i >= self.opt.get("w_norm", 12):
                if not callable(side[0]):
                    self.emit(side.pop(0))
                self.emit(side.pop(0))
        while len(side) % 5:
            self.emit(side.pop(0))
        self.s1_left = [side[k:k + 5] for k in range(0, len(side), 5)]
        self.stamp("ln1")

    def s1_reads(self, n):
        slot = n % 5
        wa, base = (vWA, slot * SLOT) if slot < 4 else (vWA + 1, slot * SLOT - 0x10000)
        wf = 64 + 32 * (n & 1)
        steps = []
        if n < 8:
            for ks in range(4):
                L = [f"ds_read_b128 {a_(16 * n + 4 * ks, 4)}, {v(vT + 9)} offset:{ks * 32}"]
                for part in range(2):
                    for j in range(2):
                        L.append(f"ds_read_b64_tr_b16 {v(wf + 8 * ks + 4 * part + 2 * j, 2)}, {v(wa)} offset:{base + part * 8192 + ks * 2048 + j * 512}")
                steps.append(L)
        else:
            for ks in range(8):
                steps.append([f"ds_read_b64_tr_b16 {v(wf + 4 * ks + 2 * j, 2)}, {v(wa)} offset:{base + ks * 2048 + j * 512}" for j in range(2)])
        return steps

    def s1_xaddr(self, n):
        A = self.A
        A(f"s_xor_b32 s74, s96, {n}\ns_lshl_b32 s74, s74, 7")
        A(f"v_add_u32 {v(vT + 9)}, s74, {v(vXA)}")

    def s1_mfmas(self, n):
        wf = 64 + 32 * (n & 1)
        aK, aV, aQ = 224, 240, 208
        out = []
        if n < 8:
            for ks in range(4):
                first = n == 0 and ks == 0
                xf = a_(16 * n + 4 * ks, 4)
                out.append(f"{MF32} {v(aK, 16)}, {v(wf + 8 * ks, 4)}, {xf}, {'0' if first else v(aK, 16)}")
                out.append(f"{MF32} {v(aV, 16)}, {xf}, {v(wf + 8 * ks + 4, 4)}, {'0' if first else v(aV, 16)}")
        else:
            for ks in range(8):
                first = n == 8 and ks == 0
                out.append(f"{MF32} {v(aQ, 16)}, {v(wf + 4 * ks, 4)}, {a_(32 * (n - 8) + 4 * ks, 4)}, {'0' if first else v(aQ, 16)}")
        return out

    def interleave(self, mf, fill, vm=(), front=0, extra=()):
        A = self.A
        k, vm, n = 0, list(vm), len(mf) - front
        nload = sum(1 for t in vm if callable(t))
        done = 0
        extra = list(extra)
        nex = len(extra)
        for i, m in enumerate(mf):
            A(m)
            upto = min(len(fill), (len(fill) * (i + 1) + n - 1) // n)
            while k < upto:
                self.emit(fill[k])
                k += 1
            while vm and (not callable(vm[0]) or done * len(mf) < nload * i + 1):
                done += callable(vm[0])
                self.emit(vm.pop(0))
            share = (i + 1) + 2 * max(0, i + 1 - n)
            while extra and (nex - len(extra)) * (len(mf) + 2 * front) < nex * share:
                self.emit(extra.pop(0))
        for it in vm + extra:
            self.emit(it)

    def qkv(self):
        A = self.A
        o = self.opt
        aK, aV, aQ = 224, 240, 208
        self.s1_xaddr(0)
        A.wait(self.dtok[0])
        A("s_waitcnt lgkmcnt(0)\ns_barrier")
        rt = {}
        for ks, st in enumerate(self.s1_reads(0)):
            for t in st:
                rt[(0, ks)] = A(t)
        late = list(self.late_setup)
        fill = [
            f"s_lshl1_add_u32 s63, {s(sHQ)}, {s(sHP)}", "s_lshl_b32 s70, s63, 18",
            f"s_lshl_b32 s71, {s(sT)}, 11", "s_add_u32 s70, s70, s71", f"s_add_u32 s70, s70, {WS_KV}", "s_add_u32 s71, s70, 0x20000",
            "s_lshl_b32 s69, s63, 13", f"s_add_u32 s69, s69, {WS_KVF}", f"s_lshl_b32 s63, {s(sT)}, 7", "s_add_u32 s72, s69, s63",
            f"v_and_b32 {v(vT)}, 15, {v(vL)}", f"v_lshrrev_b32 {v(vT + 1)}, 5, {v(vL)}", f"v_lshlrev_b32 {v(vT)}, 4, {v(vT)}",
            f"v_lshl_add_u32 {v(vT + 10)}, {v(vT + 1)}, 8, {v(vT)}",
            f"v_and_b32 {v(vT)}, 16, {v(vL)}", f"v_lshl_add_u32 {v(vT + 2)}, {v(vT)}, 13, {v(vT + 10)}",
            f"v_lshl_add_u32 {v(vT + 3)}, {v(vT)}, 8, {v(vT + 10)}",
            f"s_lshl_b32 s63, {s(sHP)}, 13", f"s_lshl_b32 s73, {s(sTT)}, 11", "s_add_u32 s63, s63, s73", f"s_add_u32 s63, s63, {XKV}",
            f"v_add_u32 {v(vT + 3)}, s63, {v(vT + 3)}", f"v_add_u32 {v(vT + 4)}, s63, {v(vO16)}",
            f"v_mov_b32 v144, {s(sENT)}", f"v_and_b32 v145, 31, {v(vL)}", "v_lshlrev_b32 v145, 2, v145",
            f"s_lshl_b32 s21, {s(sW)}, 15", "s_add_u32 s21, s21, s94",
        ]
        if self.priv:
            fill += [
                f"s_lshl_b32 s80, {s(sHP)}, 11", "s_lshl_b32 s81, s94, 5", "s_add_u32 s80, s80, s81",
                f"s_lshl_b32 s81, {s(sB)}, 16", "s_add_u32 s81, s81, s80", f"s_lshl_b32 s82, {s(sTT)}, 15", "s_add_u32 s82, s82, s81",
                f"s_add_u32 s82, s82, {WS_O + 4 * 65536}", f"s_lshl_b32 s83, {s(sTT)}, 10", "s_add_u32 s83, s83, s81", f"s_add_u32 s83, s83, {WS_H + 4 * 65536}",
                f"s_cmp_ge_u32 {s(sB)}, 28\ns_cselect_b32 s81, 0x40000000, 0",
                f"v_add_u32 v148, s81, {v(vO16)}", f"v_lshl_add_u32 v149, {v(vT)}, 11, {v(vT + 10)}", "v_add_u32 v149, s81, v149",
            ]
        late += fill + self.prefill
        self.s1_xaddr(1)
        A.wait(rt[(0, 0)])
        for n in range(8):
            mf = self.s1_mfmas(n)
            order = list(range(8)) if n < 7 else [0, 2, 4, 6, 1, 3, 5, 7]
            reads = [(ks, t) for ks, st in enumerate(self.s1_reads(n + 1)) for t in st] if n < 7 else []
            if n == 0:
                self.streams = {"dma": sum((self.grp_units(gr, 0, 0) for gr in self.s1_left), [])}
            else:
                self.streams["dma"] += self.grp_units(self.s1_dma(n + 4), 0, 0)
            for g in range(8):
                A(mf[order[g]])
                mark = len(A.lines)
                nxt = (n, order[g + 1] >> 1) if g < 7 else (n + 1, 0)
                A.wait(rt.get(nxt), self.dtok[n + 1] if g == 0 and n < 7 else None)
                if g == 0:
                    A("s_barrier")
                for _ in range((2, 3, 3, 2, 3, 2, 3, 2)[g]):
                    if reads:
                        ks, t = reads.pop(0)
                        rt[(n + 1, ks)] = A(t)
                if g == 7 and n < 6:
                    self.s1_xaddr(n + 2)
                go = g & 1 or len(self.streams["dma"]) > (8 - g) // 2
                self.credit = 1.0 if go else 0.0
                self.vm_slot(-100, 0, None if go else mark, early_ok=True)
                self.side(late, mark, o.get("kv_budget", 24))
            self.stamp(f"c{n}", "s1")
        assert len(late) <= len(self.prefill) and not self.streams["dma"]
        rest = late
        pk = 128
        for k in range(8):
            A(f"v_cvt_pk_bf16_f32 {v(pk + k)}, {v(aK + 2 * k)}, {v(aK + 2 * k + 1)}")
        A(f"buffer_store_dwordx4 {v(pk, 4)}, {v(vO16)}, {WS}, s70 offen sc1")
        A(f"buffer_store_dwordx4 {v(pk + 4, 4)}, {v(vO16)}, {WS}, s71 offen sc1")
        if self.priv:
            A(f"buffer_store_dwordx4 {v(pk, 4)}, v148, {WS}, s82 offen sc1")
            A(f"buffer_store_dwordx4 {v(pk + 4, 4)}, v148, {WS}, s82 offen offset:1024 sc1")
        for k in range(8):
            A(f"v_cvt_pk_bf16_f32 {v(pk + 8 + k)}, {v(aV + 2 * k)}, {v(aV + 2 * k + 1)}")
        A(f"buffer_store_dwordx4 {v(pk + 8, 4)}, {v(vT + 2)}, {WS}, s70 offen offset:1024 sc1")
        kvtok = A(f"buffer_store_dwordx4 {v(pk + 12, 4)}, {v(vT + 2)}, {WS}, s70 offen offset:1536 sc1")
        if self.priv:
            A(f"buffer_store_dwordx4 {v(pk + 8, 4)}, v149, {WS}, s83 offen sc1")
            kvtok = A(f"buffer_store_dwordx4 {v(pk + 12, 4)}, v149, {WS}, s83 offen offset:512 sc1")
        self.stamp("kvst")
        if o.get("warm_q", 0):
            self.warm_items()[0]()
        A.wait(self.dtok[11])
        A("s_barrier")
        reads = sum((self.s1_reads(n) for n in range(8, 12)), [])
        mf = sum((self.s1_mfmas(n) for n in range(8, 12)), [])
        rt, lead = {}, 6
        for k in range(lead):
            for t in reads[k]:
                rt[k] = A(t)
        late = [f"ds_write_b128 {v(vT + 4)}, {v(pk, 4)}", f"ds_write_b128 {v(vT + 4)}, {v(pk + 4, 4)} offset:4096",
                f"ds_write_b128 {v(vT + 3)}, {v(pk + 8, 4)} offset:1024", f"ds_write_b128 {v(vT + 3)}, {v(pk + 12, 4)} offset:1536"]
        late += self.attn_setup() + rest
        wo = sum((self.grp_units(self.wo_dma(i), 0, 0) for i in range(4)), []) if o.get("wo_early", 1) else []
        self.streams = {"dma": wo}
        A.wait(rt[0])
        for k in range(32):
            A(mf[k])
            mark = len(A.lines)
            fl = k == o.get("kvflag_k", 14)
            A.wait(rt.get(k + 1), kvtok if fl else None)
            if fl:
                A(f"buffer_store_dword v144, v145, {WS}, s72 offen sc1")
                self.stamp("kvflag")
            if k + lead < 32:
                for t in reads[k + lead]:
                    rt[k + lead] = A(t)
            go = len(wo) * 2 > o.get("wo_end", 32) - k
            self.credit = 1.0 if go else 0.0
            self.vm_slot(-100, 0, None if go else mark, early_ok=True)
            if k == o.get("kvpoll_k", 32):
                assert not wo and not any(isinstance(t, str) and "v%d," % (vT + 11) in t for t in late)
                self.kvp = self.poll_issue(vT + 11, vT + 8)
            self.side(late, mark, o.get("q_budget", 24))
        assert not wo
        self.qlate = late
        if o.get("kvpoll_k", 32) >= 32:
            self.kvp = self.poll_issue(vT + 11, vT + 8)
        if o.get("verbose"):
            print("left after Q stream:", len(late))
        for t in late:
            self.emit(t)
        lz = self.lab("kz")
        A(f"s_cmp_lg_u32 {s(sG)}, 0\ns_cbranch_scc1 {lz}")
        A(f"v_mov_b32 v147, {CONST + 16}")
        for j in range(8):
            A.raw(f"ds_read_b128 {a_(128 + 12 * j, 4)}, v147")
        A.raw("s_waitcnt lgkmcnt(0)")
        if self.priv:
            for n, at in enumerate(("s86 offen", "s87 offen", "s64 offen", "s64 offen offset:1024")):
                A.raw(f"buffer_load_dwordx4 {v(76 + 4 * n, 4)}, {v(vO16)}, {WS}, {at} sc1")
        A.label(lz)
        self.ktok = {}
        if o.get("kv_first", 0) == 1:
            A("s_waitcnt lgkmcnt(0)")
            self.kv_check()
        A(f"s_mov_b32 s63, 0x3eb8aa3b\ns_lshl_b32 s73, {s(sHP)}, 12\ns_lshl_b32 s74, {s(sTT)}, 10\ns_add_u32 s73, s73, s74\ns_add_u32 s73, s73, {XQ}")
        A(f"v_add_u32 {v(vT)}, s73, {v(vO16)}")
        A(f"s_add_u32 s73, {s(sW4K)}, {XKV}\nv_add_u32 {v(vT + 9)}, s73, {v(vO16)}\nv_add_u32 {v(vT + 4)}, s73, {v(vT + 10)}")
        A(f"s_lshl_b32 s73, {s(sW)}, 11\ns_add_u32 s73, s73, {XQ}\nv_add_u32 {v(vT + 5)}, s73, {v(vO16)}")
        for hh in range(2):
            for k in range(8):
                A(f"v_mul_f32 {v(aQ + 8 * hh + k)}, s63, {v(aQ + 8 * hh + k)}")
            for k in range(4):
                A(f"v_cvt_pk_bf16_f32 {v(pk + 4 * hh + k)}, {v(aQ + 8 * hh + 2 * k)}, {v(aQ + 8 * hh + 2 * k + 1)}")
            A(f"ds_write_b128 {v(vT)}, {v(pk + 4 * hh, 4)} offset:{2048 * hh}")
        if o.get("kv_first", 0) == 2:
            A("s_waitcnt lgkmcnt(0)")
            self.kv_check()
        A("s_waitcnt lgkmcnt(0)\ns_barrier")
        A(f"ds_read_b128 {a_(248, 4)}, {v(vT + 5)}\nds_read_b128 {a_(252, 4)}, {v(vT + 5)} offset:1024")
        for t in range(2):
            A(f"ds_read_b128 {a_(128 + 12 * (8 + t), 4)}, {v(vT + 9)} offset:{t * 2048}")
        A("s_mov_b32 exec_lo, 0xffff\ns_mov_b32 exec_hi, 0xffff")
        for t in range(2):
            for k in range(2):
                A(f"ds_read_b128 {a_(128 + 12 * (8 + t) + 4 + 4 * k, 4)}, {v(vT + 4)} offset:{t * 2048 + 1024 + k * 512}")
        A("s_mov_b64 exec, -1")
        self.stamp("q")

    def kv_block(self, blk):
        A, ktok = self.A, self.ktok
        ls = self.lab("kvs")
        A(f"s_add_u32 s71, s70, {blk * 4096}\ns_cmp_lt_u32 {s(sB)}, {4 - blk}\ns_cbranch_scc1 {ls}")
        pv = self.priv and blk == 0
        for t in range(2):
            at = f"s{86 + t} offen" if pv else f"s71 offen offset:{t * 2048}"
            A(f"buffer_load_dwordx4 {a_(128 + 12 * (2 * blk + t), 4)}, {v(vO16)}, {WS}, {at} sc1")
        A("s_mov_b32 exec_lo, 0xffff\ns_mov_b32 exec_hi, 0xffff")
        for t in range(2):
            for k in range(2):
                at = f"s64 offen offset:{t * 1024 + k * 512}" if pv else f"s71 offen offset:{t * 2048 + 1024 + k * 512}"
                ktok[blk] = A(f"buffer_load_dwordx4 {a_(128 + 12 * (2 * blk + t) + 4 + 4 * k, 4)}, {v(vT + 10)}, {WS}, {at} sc1")
        A("s_mov_b64 exec, -1")
        A.label(ls)

    def kv_check(self):
        A = self.A
        ls, lb = self.lab("spin"), self.lab("back")
        A.wait(self.kvp)
        A(f"v_xor_b32 v73, {v(vT + 8)}, {v(vTAG)}\nv_cmp_lt_u32 vcc, 15, v73\ns_cbranch_vccnz {ls}")
        A.label(lb)
        self.tail.append((ls, lb, vT + 11, 72))
        self.kv_block(0)
        self.kv_block(1)
        self.stamp("kvpoll")

    def attn_setup(self):
        mD, mF = 176, 192
        real, self.A = self.A, Asm()
        A = self.A
        A(f"v_and_b32 {v(vT)}, 31, {v(vL)}\nv_lshrrev_b32 {v(vT + 1)}, 5, {v(vL)}\nv_lshlrev_b32 v146, 2, {v(vT + 1)}")
        A(f"v_sub_u32 v146, {v(vT)}, v146")
        A(f"v_lshlrev_b32 {v(vT + 2)}, 10, {v(vT)}\nv_lshl_add_u32 {v(vT + 12)}, {v(vT + 1)}, 3, {v(vT + 2)}")
        A(f"s_lshl_b32 s20, {s(sT)}, 15\ns_add_u32 s20, s20, s94\ns_lshl_b32 s63, {s(sHP)}, 6\ns_add_u32 s20, s20, s63")
        A(f"v_lshrrev_b32 {v(vT + 1)}, 2, {v(vT)}\nv_and_b32 {v(vT)}, 3, {v(vT)}\nv_lshlrev_b32 {v(vT)}, 8, {v(vT)}")
        A(f"v_lshl_add_u32 {v(vT)}, {v(vT + 1)}, 14, {v(vT)}\ns_lshl_b32 s63, {s(sG)}, 10\ns_add_u32 s63, s63, {WS_KVF}\nv_add_u32 {v(vT + 13)}, s63, {v(vT)}")
        A(f"s_lshl_b32 s73, {s(sB)}, 1\ns_sub_u32 s73, s73, 8\nv_min_u32 {v(vT)}, 7, {v(vL)}\nv_add_u32 {v(vT)}, s73, {v(vT)}")
        A(f"v_max_i32 {v(vT)}, 0, {v(vT)}\nv_lshl_add_u32 {v(vT + 11)}, {v(vT)}, 7, s69")
        A(f"s_lshl2_add_u32 s63, {s(sHQ)}, {s(sW)}\ns_lshl_b32 s70, s63, 17\ns_add_u32 s70, s70, {WS_KV - 4 * 4096}")
        A(f"s_lshl_b32 s71, {s(sB)}, 12\ns_add_u32 s70, s70, s71")
        A(f"s_mul_i32 s22, {s(sTT)}, {32 * 3584}\ns_lshl_b32 s63, {s(sC)}, 7\ns_add_u32 s22, s22, s63")
        A(f"s_lshl2_add_u32 s63, {s(sHQ)}, {s(sW)}\ns_lshl_b32 s86, s63, 10\ns_lshl_b32 s87, {s(sB)}, 16\ns_add_u32 s86, s86, s87")
        A(f"s_add_u32 s86, s86, {WS_O}\ns_add_u32 s87, s86, 32768")
        A(f"s_lshl_b32 s89, {s(sB)}, 5\ns_add_u32 s89, s89, s63\ns_lshl_b32 s89, s89, 2\ns_add_u32 s89, s89, {WS_OF}")
        A(f"s_lshl_b32 s84, {s(sT)}, 15\ns_lshl_b32 s63, s94, 5\ns_add_u32 s84, s84, s63\ns_lshl_b32 s63, {s(sHP)}, 11\ns_add_u32 s84, s84, s63\ns_add_u32 s64, s84, {WS_H}")
        if self.opt.get("rot_gu", 1):
            A(f"s_lshr_b32 s99, {s(sC)}, 1\ns_and_b32 s99, s99, 7\ns_xor_b32 s99, s99, {s(sG)}")
        else:
            A(f"s_mov_b32 s99, {s(sG)}")
        rd = self.opt.get("rot_dn", 0)
        if rd == 1:
            A(f"s_min_u32 s100, {s(sHQ)}, 6")
        elif rd == 2:
            A(f"s_and_b32 s100, {s(sTB)}, 1\ns_mul_i32 s100, s100, 3\ns_add_u32 s100, s100, {s(sHQ)}\ns_sub_u32 s63, s100, 7\ns_min_u32 s100, s100, s63")
        else:
            A("s_mov_b32 s100, 0")
        self.pt = self.pretouch()
        A(f"s_mul_i32 s63, {s(sHP)}, {32768 - 8192}\ns_add_u32 s63, s63, {5 * SLOT}")
        A(f"v_add_u32 {v(vT + 2)}, s63, {v(vDN)}\nv_add_u32 {v(vT + 3)}, s63, {v(vDN + 1)}")
        A(f"v_mov_b32 {v(vT + 7)}, 0x207")
        A(f"v_sub_u32 v151, 31, {v(vL)}\nv_ashrrev_i32 v151, 31, v151\nv_and_b32 v151, {NEG}, v151\nv_xor_b32 v152, {NEG}, v151")
        A(f"s_mov_b32 s63, {MTAB}\nv_lshl_add_u32 v153, {v(vL)}, 2, s63\nds_write2_b32 v153, v151, v152 offset0:0 offset1:64")
        A(f"v_sub_u32 v146, 31, v146\nv_lshl_add_u32 v146, v146, 2, s63\n@wait")
        for m, base in ((mD, 0), (mF, 64)):
            for r in range(0, 16, 2):
                kr = 8 * (r >> 2) + (r & 3)
                A(f"ds_read2_b32 {v(m + r, 2)}, v146 offset0:{base + kr} offset1:{base + kr + 1}")
        self.A = real
        st, out = {}, []
        for t in A.lines:
            if t.startswith("ds_write2"):
                out.append(lambda t=t: st.__setitem__(0, real(t)))
            elif t == "@wait":
                out.append(lambda: real.wait(st[0]))
            else:
                out.append(t)
        return out

    def attention(self):
        A = self.A
        o = self.opt
        mD, mF, S0, P, O0 = 176, 192, 96, 128, 144
        A("s_waitcnt lgkmcnt(0)")

        tiles = [(0, 8, "d"), (1, 8, ""), (1, 9, "d"), (0, 0, "f"), (0, 1, ""), (1, 1, "f")]
        for j in range(2, 8):
            tiles += [(0, j, ""), (1, j, "")]
        started = [False, False]

        def s_mfma(n):
            q, j, m = tiles[n]
            c = {"": "0", "d": v(mD, 16), "f": v(mF, 16)}[m]
            return f"{MF32} {v(S0 + 16 * (n & 1), 16)}, {a_(128 + 12 * j, 4)}, {a_(248 + 4 * q, 4)}, {c}"

        def body(n, fill, head=None):
            q, j, m = tiles[n]
            S = S0 + 16 * (n & 1)
            O = O0 + 16 * q
            fill = list(fill)
            per = (len(fill) + 6) // 7
            for hh in range(2):
                for k in range(4):
                    r = 8 * hh + 2 * k
                    A(f"v_exp_f32 {v(S + r)}, {v(S + r)}\nv_exp_f32 {v(S + r + 1)}, {v(S + r + 1)}")
                    if k > 0:
                        A(f"v_cvt_pk_bf16_f32 {v(P + 4 * hh + k - 1)}, {v(S + r - 2)}, {v(S + r - 1)}")
                    if hh == 0 and k == 1 and head:
                        A(head)
                    if hh == 1 and k == 0:
                        A(f"v_cvt_pk_bf16_f32 {v(P + 3)}, {v(S + 6)}, {v(S + 7)}")
                    if hh == 1 and k == 2:
                        A(f"{MF32} {v(O, 16)}, {a_(128 + 12 * j + 4, 4)}, {v(P, 4)}, {v(O, 16) if started[q] else '0'}")
                        started[q] = True
                    for _ in range(per if hh or k else 0):
                        if fill:
                            self.emit(fill.pop(0))
            A(f"v_cvt_pk_bf16_f32 {v(P + 7)}, {v(S + 14)}, {v(S + 15)}")
            return f"{MF32} {v(O, 16)}, {a_(128 + 12 * j + 8, 4)}, {v(P + 4, 4)}, {v(O, 16)}"

        ktok, kv_block = self.ktok, self.kv_block
        woreads = [f"ds_read_b64_tr_b16 {a_(8 * i + 4 * ct + 2 * j, 2)}, {v(vT + 2 + ct)} offset:{i * 2048 + j * 1024}"
                   for i in range(16) for ct in range(2) for j in range(2)]
        self.gtok = {}
        nb = self.opt.get("local_before", 1)
        A(s_mfma(0))
        head = None
        for n in range(3):
            if n == nb:
                break
            if n < 2:
                A(s_mfma(n + 1))
            head = body(n, [], head)
        if head:
            A(head)
            head = None
        self.stamp("local")
        if not o.get("kv_first", 0):
            self.kv_check()
        early = o.get("wo_early", 1) and o.get("wo_read_early", 0)
        if early:
            A("s_barrier")
            if nb == 3:
                for t in woreads:
                    A(t)
        for n in range(nb, 3):
            if n < 2:
                A(s_mfma(n + 1))
            k0, k1 = 64 * (n - nb) // (3 - nb), 64 * (n + 1 - nb) // (3 - nb)
            fl = woreads[k0:k1] if early else []
            if n == o.get("b2_tile", 9):
                fl = fl + [lambda: kv_block(2)]
            if n == o.get("b3_tile", 3):
                fl = fl + [lambda: kv_block(3)]
            head = body(n, fl, head)
        if 2 not in ktok:
            kv_block(2)
        A("s_waitcnt lgkmcnt(0)\ns_barrier")
        fills = {n: [] for n in range(3, 18)}
        if 3 not in ktok:
            fills[o.get("b3_tile", 3)] = [lambda: kv_block(3)]
        xr = [f"buffer_load_dwordx2 {v(64 + 2 * j, 2)}, {v(vT + 12)}, {X}, s20 offen offset:{j * 16}" for j in range(4)]
        chk = {}
        if self.wr:
            wt = {}
            for n, at in enumerate(("s86 offen", "s87 offen", "s64 offen", "s64 offen offset:1024")):
                fills[o.get("wr_tile", 4) + n // 2].append(lambda at=at: wt.__setitem__(0, A(f"buffer_store_dwordx4 {v(mD, 4)}, {v(vO16)}, {WS}, {at} sc1")))
            fills[o.get("rd_tile", 11)] += [lambda: A.wait(wt[0])] + self.pt
            self.pt = []
        fills[o.get("pt_tile", 5)] += xr + self.pt + [lambda: chk.__setitem__(0, self.poll_issue(vT + 13, 72))]
        groups = [] if o.get("wo_early", 1) else [self.wo_dma(i) for i in range(4)]
        self.guq = sum(([u + [("g", j)] for u in self.grp_units(self.gu_dma(j), 0, -1)] for j in range(8)), [])
        d0, d1 = o.get("d0", 6), o.get("d1", 12)
        units = sum((self.grp_units(g, 0, 0) for g in groups), []) + [self.guq.pop(0) for _ in range(o.get("uD", 4))]
        for n, u in enumerate(units):
            fills[d0 + n * (d1 - d0) // len(units)] += u[2]
        if o.get("spare_warm", 2) == 1:
            fills[d0].insert(0, self.spare_warm)
        self.woreads = [] if early else woreads
        A.wait(ktok[0])
        self.stamp("kv0")
        A(s_mfma(3))
        for n in range(3, 18):
            if n + 1 < 18:
                A.wait(ktok.get(tiles[n + 1][1] >> 1))
                A(s_mfma(n + 1))
            head = body(n, fills[n], head)
        A(head)
        self.stamp("attn")
        A("s_mov_b32 s90, 0")
        A.label("L_onorm")
        for q in range(2):
            O = O0 + 16 * q
            A(f"v_rcp_f32 {v(O + 9)}, {v(O + 8)}")
            for k in range(8):
                A(f"v_mul_f32 {v(O + k)}, {v(O + k)}, {v(O + 9)}")
            for k in range(4):
                A(f"v_cvt_pk_bf16_f32 {v(P + 8 + 4 * q + k)}, {v(O + 2 * k)}, {v(O + 2 * k + 1)}")
            self.otok = A(f"buffer_store_dwordx4 {v(P + 8 + 4 * q, 4)}, {v(vO16)}, {WS}, s{86 + q} offen{self.ohs}")
        for k in range(1, 8):
            src = O0 + 2 * k if k < 4 else O0 + 16 + 2 * (k - 4)
            A(f"v_pk_add_f32 {v(O0, 2)}, {v(O0, 2)}, {v(src, 2)}")
        A(f"v_add_f32 {v(O0)}, {v(O0)}, {v(O0 + 1)}\ns_mov_b32 s63, 0x2b800000\ns_mov_b32 s73, {0x7b800000 if not self.force_fb else 0x2b800000}")
        A(f"v_cmp_class_f32 vcc, {v(O0)}, {v(vT + 7)}")
        for q in range(2):
            A(f"v_cmp_nle_f32 s[74:75], s63, {v(O0 + 16 * q + 8)}\ns_or_b64 vcc, vcc, s[74:75]")
            A(f"v_cmp_nge_f32 s[74:75], s73, {v(O0 + 16 * q + 8)}\ns_or_b64 vcc, vcc, s[74:75]")
        A("s_cmp_lg_u32 s90, 0\ns_cbranch_scc1 L_ook\ns_cmp_lg_u64 vcc, 0\ns_cbranch_scc1 L_truemax")
        A.label("L_ook")
        ls, lb = self.lab("spin"), self.lab("back")
        A.wait(chk[0])
        A(f"v_xor_b32 v73, v72, {v(vTAG)}\nv_cmp_lt_u32 vcc, 15, v73\ns_cbranch_vccnz {ls}")
        A.label(lb)
        self.tail.append((ls, lb, vT + 13, 72))
        A(f"v_cmp_ne_u32 vcc, {s(sENT)}, v72\ns_cmp_eq_u64 vcc, 0\ns_cselect_b32 {s(sFAST)}, {0 if self.force_slow else 1}, 0")

    def truemax(self):
        A = self.A
        mD, mF, S, P, O0 = 176, 192, 96, 128, 144
        K, V, M = 208, 212, 220
        A.label("L_truemax")
        A("s_waitcnt vmcnt(0)\ns_mov_b32 s90, 1")
        for k in range(8):
            A(f"v_mov_b32 {v(V + k)}, {ONES}")

        def scores(q, lab):
            A(f"s_cmp_eq_u32 s73, 0\ns_cbranch_scc1 {lab}f\ns_cmp_eq_u32 s73, 8\ns_cbranch_scc1 {lab}d")
            for tag, c in (("", "0"), ("f", v(mF, 16)), ("d", v(mD, 16))):
                if tag:
                    A.label(lab + tag)
                A(f"{MF32} {v(S, 16)}, {v(K, 4)}, {a_(248 + 4 * q, 4)}, {c}")
                if tag != "d":
                    A(f"s_branch {lab}x")
            A.label(lab + "x")
            A("s_nop 15")

        for q in range(2):
            O = O0 + 16 * q
            for ps in range(2):
                lab = f"L_tm{q}{ps}"
                if ps == 0:
                    A(f"v_mov_b32 {v(M)}, {NEG}")
                else:
                    for r in range(16):
                        A(f"v_mov_b32 {v(O + r)}, 0")
                A(f"s_lshl_b32 s73, {s(sB)}, 1\ns_sub_i32 s73, {8 - q}, s73\ns_max_i32 s73, s73, 0")
                A.label(lab)
                A(f"s_add_u32 s71, s73, {q}\ns_lshl_b32 s71, s71, 11\ns_add_u32 s71, s71, s70")
                A(f"buffer_load_dwordx4 {v(K, 4)}, {v(vO16)}, {WS}, s71 offen sc1")
                if ps:
                    A("s_mov_b32 exec_lo, 0xffff\ns_mov_b32 exec_hi, 0xffff")
                    for k in range(2):
                        A(f"buffer_load_dwordx4 {v(V + 4 * k, 4)}, {v(vT + 10)}, {WS}, s71 offen offset:{1024 + k * 512} sc1")
                    A("s_mov_b64 exec, -1")
                A("s_waitcnt vmcnt(0)")
                scores(q, lab)
                if ps == 0:
                    for r in range(0, 16, 2):
                        A(f"v_max3_f32 {v(M)}, {v(S + r)}, {v(S + r + 1)}, {v(M)}")
                else:
                    for r in range(16):
                        A(f"v_sub_f32 {v(S + r)}, {v(S + r)}, {v(M)}")
                    for r in range(16):
                        A(f"v_exp_f32 {v(S + r)}, {v(S + r)}")
                    for k in range(8):
                        A(f"v_cvt_pk_bf16_f32 {v(P + k)}, {v(S + 2 * k)}, {v(S + 2 * k + 1)}")
                    for k in range(2):
                        A(f"{MF32} {v(O, 16)}, {v(V + 4 * k, 4)}, {v(P + 4 * k, 4)}, {v(O, 16)}")
                    A("s_nop 15")
                A(f"s_add_u32 s73, s73, 1\ns_cmp_le_u32 s73, 8\ns_cbranch_scc1 {lab}")
                if ps == 0:
                    A(f"v_mov_b32 {v(M + 1)}, {v(M)}\nv_permlane32_swap_b32 {v(M)}, {v(M + 1)}\nv_max_f32 {v(M)}, {v(M)}, {v(M + 1)}")
        A("s_branch L_onorm")

    def gu_dma(self, j):
        su = f"s_xor_b32 s91, s99, {0 if self.opt.get('x_gu') else j}\ns_mul_i32 s91, s91, {64 * 3584}\ns_add_u32 s91, s91, s22"
        return self.grp2(j, su, 91, vD3584, WGU, self.gtok, j)

    def warm_items(self):
        A = self.A

        def go():
            A(f"s_mul_i32 s61, s95, {14 * 128}\nv_lshl_add_u32 v146, {v(vL)}, 7, s61\ns_mov_b64 exec, 0x3fff")
            A(f"global_load_dword {v(vJ)}, v146, s[52:53]\nglobal_load_dword {v(vJ)}, v146, s[54:55]")
            if self.opt.get("warm_q", 0) == 2:
                A(f"global_load_dword {v(vJ)}, v146, s[56:57]")
            A("s_mov_b64 exec, -1")
        return [go]

    def spare_warm(self):
        A = self.A
        ls = self.lab("sw")
        A(f"s_cmp_lt_u32 {s(sC)}, 28\ns_cbranch_scc1 {ls}")
        A(f"s_sub_u32 s63, s95, {224 * 4}\ns_mul_i32 s63, s63, {112 * 128}\nv_lshlrev_b32 {v(vT)}, 7, {v(vL)}\nv_min_u32 {v(vT + 1)}, {47 * 128}, {v(vT)}")
        A.raw(f"buffer_load_dword {v(vJ)}, {v(vT)}, {WD}, s63 offen")
        A("s_add_u32 s63, s63, 8192")
        A.raw(f"buffer_load_dword {v(vJ)}, {v(vT + 1)}, {WD}, s63 offen")
        A.label(ls)

    def gu_more(self, n):
        out = []
        for _ in range(n):
            if self.guq:
                out += self.guq.pop(0)[2]
        return out

    def rot7(self, reg, j, shift, base):
        if self.opt.get("x_hh") and shift == 13:
            return f"s_xor_b32 s{reg}, s97, {j << 12}"
        if not self.opt.get("rot_dn", 0):
            return f"s_add_u32 s{reg}, s{base}, {j << shift}"
        t = {70: 101, 71: 75, 62: 74}[reg]
        return (f"s_add_u32 s{reg}, s100, {j}\ns_sub_u32 s{t}, s{reg}, 7\ns_min_u32 s{reg}, s{reg}, s{t}\n"
                f"s_lshl_b32 s{reg}, s{reg}, {shift}\ns_add_u32 s{reg}, s{reg}, s{base}")

    def dn_dma(self, st):
        base = self.rot7(62, st % 7, 17, 23 if st < 7 else 80) if not self.opt.get("x_dn") else "s_mov_b32 s62, s23"
        return self.grp2((8 + st) % 9, base, 62, vD1024, WD, self.dntok, st)

    def pretouch(self):
        A = self.A
        A(f"s_and_b32 {s(sPAR)}, {s(sC)}, 1\ns_lshl_b32 s63, {s(sG)}, 3\ns_add_u32 s63, s63, {s(sW)}")
        A(f"s_lshl_b32 {s(sTA)}, {s(sPAR)}, 2\ns_add_u32 {s(sTA)}, {s(sTA)}, s63\ns_xor_b32 {s(sTBB)}, {s(sTA)}, 4")
        A(f"s_lshr_b32 {s(sE)}, {s(sTB)}, 1")
        if not self.opt.get("pretouch", 1):
            return []
        t0, t1, t2, t3 = vT, vT + 1, vT + 6, vT + 3
        if self.ohs or self.priv:
            A(f"v_and_b32 {v(t0)}, 1, {v(vL)}\nv_bfe_u32 {v(t1)}, {v(vL)}, 1, 1\nv_lshlrev_b32 {v(t0)}, 7, {v(t0)}\nv_lshl_add_u32 {v(t0)}, {v(t1)}, 11, {v(t0)}")
            A(f"s_lshl_b32 s63, {s(sT)}, 12\ns_lshl1_add_u32 s63, s94, s63\ns_add_u32 s63, s63, {WS_ST}\nv_add_u32 {v(t2)}, s63, {v(t0)}")
        else:
            A(f"v_and_b32 {v(t0)}, 7, {v(vL)}\nv_lshlrev_b32 {v(t0)}, 7, {v(t0)}\nv_bfe_u32 {v(t1)}, {v(vL)}, 3, 1")
            A(f"s_lshl_b32 s63, {s(sHQ)}, 2\ns_add_u32 s63, s63, {s(sW)}\ns_lshl_b32 s63, s63, 10\ns_lshl_b32 s73, {s(sB)}, 16\ns_add_u32 s63, s63, s73\ns_add_u32 s63, s63, {WS_O}")
            A(f"v_lshl_add_u32 {v(t2)}, {v(t1)}, 15, {v(t0)}\nv_add_u32 {v(t2)}, s63, {v(t2)}")
            A(f"s_lshl_b32 s63, {s(sT)}, 15\ns_lshl_b32 s73, {s(sHQ)}, 12\ns_add_u32 s63, s63, s73\ns_lshl_b32 s73, {s(sHP)}, 11\ns_add_u32 s63, s63, s73\ns_add_u32 s63, s63, {WS_H}")
            A(f"v_lshl_add_u32 {v(t3)}, {v(t1)}, 10, {v(t0)}\nv_add_u32 {v(t3)}, s63, {v(t3)}")
            A(f"v_cmp_gt_u32 vcc, 16, {v(vL)}\nv_cndmask_b32 {v(t2)}, {v(t3)}, {v(t2)}, vcc")
            A(f"s_lshl_b32 s63, {s(sT)}, 12\ns_lshl1_add_u32 s63, s94, s63\ns_add_u32 s63, s63, {WS_ST}")
            A(f"v_and_b32 {v(t0)}, 0x80, {v(t0)}\nv_lshl_add_u32 {v(t0)}, {v(t1)}, 11, {v(t0)}\nv_add_u32 {v(t3)}, s63, {v(t0)}")
            A(f"v_cmp_gt_u32 vcc, 32, {v(vL)}\nv_cndmask_b32 {v(t2)}, {v(t3)}, {v(t2)}, vcc")
        for lane, expr in ((50, f"s_lshl_b32 s63, {s(sB)}, 7\ns_add_u32 s63, s63, {WS_OF}"),
                           (51, f"s_lshl_b32 s63, {s(sT)}, 7\ns_add_u32 s63, s63, {WS_HF}"),
                           (52, f"s_lshl_b32 s63, {s(sT)}, 7\ns_add_u32 s63, s63, {WS_HHF}")):
            A(expr)
            A(f"v_writelane_b32 {v(t2)}, s63, {lane}")
        return [f"buffer_load_dword {v(vJ)}, {v(t2)}, {WS}, 0 offen sc1"]

    def pretouch_hh(self):
        A = self.A
        if not self.opt.get("pretouch_hh", 0):
            return []
        t0, t1 = vT + 6, vT + 1
        A(f"s_mul_i32 s63, {s(sTA)}, 114688\ns_mul_i32 s73, {s(sTBB)}, 114688\nv_mov_b32 {v(t0)}, s63\nv_mov_b32 {v(t1)}, s73")
        A(f"v_cmp_gt_u32 vcc, 32, {v(vL)}\nv_cndmask_b32 {v(t0)}, {v(t1)}, {v(t0)}, vcc")
        A(f"v_and_b32 {v(t1)}, 31, {v(vL)}\nv_lshl_add_u32 {v(t0)}, {v(t1)}, 7, {v(t0)}")
        A(f"s_min_u32 s63, {s(sC)}, 27\ns_lshl_b32 s63, s63, 12\ns_add_u32 s63, s63, {WS_HH}\nv_add_u32 {v(t0)}, s63, {v(t0)}")
        return [lambda: A(f"buffer_load_dword {v(vJ)}, {v(t0)}, {WS}, 0 offen sc1")]

    def wo(self):
        A = self.A
        aK, aS, rc = 64, 80, 96
        for it in self.gu_more(self.opt.get("uE1", 0)):
            self.emit(it)
        A(f"s_lshl_b32 s63, {s(sB)}, 7\ns_lshl_b32 s73, {s(sHP)}, 6\ns_add_u32 s63, s63, s73\ns_add_u32 s63, s63, {WS_OF}")
        A(f"v_and_b32 {v(vT + 4)}, 15, {v(vL)}\nv_lshlrev_b32 {v(vT + 4)}, 2, {v(vT + 4)}\nv_add_u32 {v(vT + 11)}, s63, {v(vT + 4)}")
        A(f"s_lshl_b32 s70, {s(sT)}, 15\ns_lshl_b32 s63, {s(sHP)}, 14\ns_add_u32 s70, s70, s63\ns_add_u32 s70, s70, {WS_O}")
        if not self.opt.get("wo_early", 1):
            A.wait(self.dtok["wo"])
            A("s_barrier")
        for t in self.woreads:
            A(t)
        self.dntok = {}
        self.publish([self.otok], "s89")
        self.stamp("opub")
        for it in self.gu_more(self.opt.get("uE2", 0)):
            self.emit(it)
        assert len(self.guq) >= 12
        for j in range(8):
            A(f"v_lshlrev_b32 {v(vH + 2 * j)}, 16, {v(64 + j)}\nv_and_b32 {v(vH + 2 * j + 1)}, s66, {v(64 + j)}")
        A(f"v_bfe_u32 {v(vT + 2)}, {v(vL)}, 4, 1\nv_lshlrev_b32 {v(vT + 13)}, 2, {v(vT + 4)}\nv_lshl_add_u32 {v(vT + 13)}, {v(vT + 2)}, 3, {v(vT + 13)}")
        A(f"v_lshrrev_b32 {v(vT + 3)}, 5, {v(vL)}\nv_lshl_add_u32 {v(vT + 13)}, {v(vT + 3)}, 11, {v(vT + 13)}")
        A(f"s_lshl_b32 s65, {s(sT)}, 12\ns_lshl1_add_u32 s65, s94, s65\ns_lshl2_add_u32 s65, {s(sHP)}, s65\ns_add_u32 s65, s65, {WS_ST}")
        A(f"s_lshl_b32 s72, {s(sT)}, 7\ns_lshl3_add_u32 s72, {s(sHQ)}, s72\ns_lshl2_add_u32 s72, {s(sHP)}, s72\ns_add_u32 s72, s72, {WS_HF}")
        self.poll(vT + 11)
        self.stamp("opoll")
        otok = []
        ol = []
        for i in range(16):
            if i % 4 == 0 and i:
                ol.append("s_add_u32 s70, s70, 4096")
            ol.append(lambda i=i: otok.append(A(f"buffer_load_dwordx4 {a_(128 + 4 * i, 4)}, {v(vO16)}, {WS}, s70 offen offset:{(i & 3) * 1024} sc1")))
        side = ol + self.gu_more(self.opt.get("uF", 4))
        while len(otok) < 8:
            self.emit(side.pop(0))
        if self.woreads:
            A("s_waitcnt lgkmcnt(0)")
            if len(self.guq) < 12:
                A("s_barrier")
        for t in self.pair_setup():
            A(t)
        keep = lambda i: f"{MF32} {v(vH, 16)}, {a_(8 * i, 4)}, {a_(128 + 4 * i, 4)}, {v(vH, 16)}"
        lag = self.opt.get("wo_lag", 6)
        for i in range(16):
            A.wait(otok[i])
            A(f"{MF32} {v(aS, 16)}, {a_(8 * i + 4, 4)}, {a_(128 + 4 * i, 4)}, {v(aS, 16) if i else '0'}")
            if i < 16 - lag:
                A(keep(i))
            if side and not callable(side[0]):
                self.emit(side.pop(0))
            if side:
                self.emit(side.pop(0))
        for it in side:
            self.emit(it)
        self.stamp("womm")
        toks = self.pair_exchange(aS, rc, [keep(i) for i in range(16 - lag, 16)])
        pk = 112
        for hh in range(2):
            A.wait(toks[2 * hh + 1])
            for k in range(4 * hh, 4 * hh + 4):
                A(f"v_pk_add_f32 {v(vH + 2 * k, 2)}, {v(vH + 2 * k, 2)}, {v(rc + 2 * k, 2)}")
            for k in range(4 * hh, 4 * hh + 4):
                A(f"v_cvt_pk_bf16_f32 {v(pk + k)}, {v(vH + 2 * k)}, {v(vH + 2 * k + 1)}")
            A(f"buffer_store_dwordx4 {v(pk + 4 * hh, 4)}, {v(vO16)}, {WS}, s64 offen offset:{1024 * hh}{self.ohs}")
        su, sq = 120, 122
        A(f"v_pk_add_f32 {v(su, 2)}, {v(vH, 2)}, {v(vH + 2, 2)}\nv_pk_mul_f32 {v(sq, 2)}, {v(vH, 2)}, {v(vH, 2)}")
        A(f"v_pk_fma_f32 {v(sq, 2)}, {v(vH + 2, 2)}, {v(vH + 2, 2)}, {v(sq, 2)}")
        for k in range(2, 8):
            A(f"v_pk_add_f32 {v(su, 2)}, {v(su, 2)}, {v(vH + 2 * k, 2)}\nv_pk_fma_f32 {v(sq, 2)}, {v(vH + 2 * k, 2)}, {v(vH + 2 * k, 2)}, {v(sq, 2)}")
        A(f"v_add_f32 {v(su)}, {v(su)}, {v(su + 1)}\nv_add_f32 {v(sq)}, {v(sq)}, {v(sq + 1)}")
        A(f"v_permlane32_swap_b32 {v(su)}, {v(sq)}\nv_add_f32 {v(su)}, {v(su)}, {v(sq)}")
        tok = A(f"buffer_store_dword {v(su)}, {v(vT + 13)}, {WS}, s65 offen")
        self.stamp("hst")
        for it in self.gu_more(self.opt.get("uG1", 0)):
            self.emit(it)
        real, self.A = self.A, Asm()
        self.A(f"s_mul_i32 s63, {s(sHP)}, 14\ns_add_u32 s23, s63, {s(sE)}\ns_sub_u32 s80, s63, {s(sE)}\ns_add_u32 s80, s80, 1")
        self.A(f"s_lshl_b32 s81, s23, 12\ns_lshl_b32 s82, s80, 12\ns_lshl_b32 s83, s23, 2\ns_lshl_b32 s84, s80, 2")
        self.A(f"s_lshl_b32 s63, {s(sTT)}, 15\ns_add_u32 s63, s63, s94")
        self.A("s_lshl_b32 s23, s23, 16\ns_add_u32 s23, s23, s63\ns_lshl_b32 s80, s80, 16\ns_add_u32 s80, s80, s63")
        self.gu_setup()
        setup, self.A = self.A.lines, real
        n = self.opt.get("hpub_fill", 60)
        for t in setup[:n]:
            A(t)
        self.publish([tok], "s72")
        self.stamp("hpub")
        self.nres = sum(1 for j in range(8) if j in self.gtok and A.covered(self.gtok[j]))
        for it in self.gu_more(self.opt.get("uG2", 0)):
            self.emit(it)
        for t in setup[n:]:
            A(t)
        self.pthh = self.pretouch_hh()

    def pair_setup(self):
        return [f"s_add_u32 s63, {s(sW4K)}, {RED}", f"v_add_u32 {v(vT + 2)}, s63, {v(vO16)}", f"v_xor_b32 {v(vT + 3)}, 0x2000, {v(vT + 2)}"]

    def pair_exchange(self, aS, rc, mf):
        A = self.A
        toks = []
        steps = [None, None][:min(2, len(mf) // 3)]
        steps += [f"ds_write_b128 {v(vT + 2)}, {v(aS + 4 * k, 4)} offset:{k * 1024}" for k in range(4)]
        steps += [lambda: (A("s_waitcnt lgkmcnt(0)\ns_barrier"),
                           [toks.append(A(f"ds_read_b128 {v(rc + 4 * k, 4)}, {v(vT + 3)} offset:{k * 1024}")) for k in range(4)])]
        for m in mf:
            self.emit(m)
            if steps:
                st = steps.pop(0)
                if st:
                    self.emit(st)
        for st in steps:
            if st:
                self.emit(st)
        return toks

    def stats_loads(self, sTile, dst, store, key, n):
        A = self.A
        items = [f"s_lshl_b32 s61, {s(sTile)}, 12\ns_add_u32 s61, s61, {WS_ST}"]
        for i in range(n):
            t = f"buffer_load_dwordx4 {v(dst + 4 * i, 4)}, {v(vO16)}, {WS}, s61 offen offset:{i * 1024} sc1"
            items.append(lambda t=t: store.__setitem__(key, A(t)))
        return items

    def stats_reduce(self, src, out):
        L = [f"v_add_f32 {v(src + k)}, {v(src + k)}, {v(src + k + 1)}" for k in (0, 2, 4, 6)]
        L += [f"v_add_f32 {v(src)}, {v(src)}, {v(src + 4)}", f"v_add_f32 {v(src + 2)}, {v(src + 2)}, {v(src + 6)}",
              f"v_permlane16_swap_b32 {v(src)}, {v(src + 2)}", f"v_add_f32 {v(src)}, {v(src)}, {v(src + 2)}",
              f"v_mov_b32 {v(src + 2)}, {v(src)}", f"v_permlane32_swap_b32 {v(src)}, {v(src + 2)}",
              f"v_add_f32 {v(src)}, {v(src)}, {v(src + 2)}", f"v_mul_f32 {v(out)}, s67, {v(src)}"]
        return L

    def gu_reads(self, k):
        wf = 192 + 16 * (k & 1)
        grp, ks = k >> 2, k & 3
        hi = 4 if grp >= 4 else 0
        base = (grp & 3) * SLOT + ks * 2048
        return [f"ds_read_b64_tr_b16 {v(wf + 4 * cp + 2 * j, 2)}, {v(vGU + hi + cp)} offset:{base + j * 1024}" for cp in range(4) for j in range(2)]

    def gu_epilogue(self, acc, sbase, state):
        A = self.A
        L = []
        sc = ' sc1' if self.opt.get('hh_sc1', 3) & (1 if sbase == 87 else 2) else ''
        for cp in range(4):
            a0 = acc + 16 * cp
            L.append(f"s_xor_b32 s86, {s(sbase)}, {cp << 10}")
            L += [f"v_mul_f32 {v(a0 + r)}, {v(a0 + r)}, {v(a0 + 8 + r)}" for r in range(8)]
            L += [f"v_cvt_pk_bf16_f32 {v(a0 + 8 + r)}, {v(a0 + 2 * r)}, {v(a0 + 2 * r + 1)}" for r in range(4)]
            L.append(lambda a0=a0: state.__setitem__("st", A(f"buffer_store_dwordx4 {v(a0 + 8, 4)}, {v(vO16)}, {WS}, s86 offen{sc}" if not self.opt.get("x_st") else f"buffer_load_dword {v(vJ)}, off, {WS}, s97")))
        return L

    @staticmethod
    def split_mean(m, out):
        return [f"v_and_b32 {v(m + 1)}, s66, {v(m)}", f"v_sub_f32 {v(m)}, {v(m)}, {v(m + 1)}",
                f"v_permlane32_swap_b32 {v(m + 1)}, {v(m)}", f"v_cvt_pk_bf16_f32 {v(out)}, -{v(m + 1)}, -{v(m + 1)}"]

    def gu_setup(self):
        A = self.A
        sel = 228
        A(f"v_mov_b32 {v(vT + 2)}, {s(sT)}\nv_mov_b32 {v(vT + 3)}, {s(sTBB)}\nv_cmp_gt_u32 vcc, 32, {v(vL)}\nv_cndmask_b32 {v(vT + 2)}, {v(vT + 2)}, {v(vT + 3)}, vcc")
        A(f"v_mov_b32 {v(vT + 3)}, {s(sTA)}\nv_cmp_gt_u32 vcc, 16, {v(vL)}\nv_cndmask_b32 {v(vT + 2)}, {v(vT + 2)}, {v(vT + 3)}, vcc")
        A(f"v_lshl_add_u32 {v(vT + 2)}, {v(vT + 2)}, 7, {v(vT + 4)}\nv_add_u32 {v(vT + 5)}, {WS_HF}, {v(vT + 2)}")
        A(f"v_and_b32 {v(vT + 2)}, 31, {v(vL)}")
        for r in range(232, 250):
            A(f"v_mov_b32 {v(r)}, 0")
        A(f"s_lshl_b32 s63, {s(sW)}, 7\ns_add_u32 s63, s63, {RED}\nv_lshl_add_u32 {v(vT + 9)}, {v(vT + 2)}, 2, s63")
        A(f"v_lshrrev_b32 {v(vT + 2)}, 2, {v(vL)}\nv_xor_b32 {v(vT + 2)}, {v(vT + 2)}, {v(vL)}\nv_bfe_u32 {v(vT + 2)}, {v(vT + 2)}, 2, 1")
        A(f"v_subrev_u32 {v(vT + 2)}, 1, {v(vT + 2)}\nv_and_b32 {v(sel)}, {ONES}, {v(vT + 2)}")
        for k in range(1, 4):
            A(f"v_mov_b32 {v(sel + k)}, {v(sel)}")
        A(f"v_min_u32 {v(vT + 2)}, 6, {v(vL)}\nv_lshlrev_b32 {v(vT + 2)}, 3, {v(vT + 2)}")
        A(f"s_lshl_b32 s63, {s(sT)}, 7\ns_add_u32 s63, s63, {WS_HHF}\ns_add_u32 s83, s83, s63\ns_add_u32 s84, s84, s63")
        A(f"v_add_u32 {v(vT + 7)}, s83, {v(vT + 2)}\nv_add_u32 {v(vT + 8)}, s84, {v(vT + 2)}")
        A(f"s_mul_i32 s63, {s(sT)}, 114688\ns_add_u32 s63, s63, {WS_HH}\ns_add_u32 s81, s81, s63\ns_add_u32 s82, s82, s63")
        for tile, sb, sf, sh in ((sTA, 87, 89, 97), (sTBB, 88, 90, 98)):
            A(f"s_mul_i32 s{sb}, {s(tile)}, 114688\ns_lshl_b32 s63, {s(sC)}, 12\ns_add_u32 s{sb}, s{sb}, s63\ns_add_u32 s{sb}, s{sb}, {WS_HH}\ns_lshl_b32 s63, {s(sW)}, 10\ns_add_u32 s{sb}, s{sb}, s63")
            A(f"s_lshl_b32 s{sf}, {s(tile)}, 7\ns_lshl_b32 s63, {s(sC)}, 2\ns_add_u32 s{sf}, s{sf}, s63\ns_add_u32 s{sf}, s{sf}, {WS_HHF}")
            A(f"s_lshl_b32 s{sh}, {s(tile)}, 15\ns_add_u32 s{sh}, s{sh}, {WS_H}\ns_lshl_b32 s63, s99, 12\ns_add_u32 s{sh}, s{sh}, s63")

    def frag_stream(self, n, areg, sreg, setup, toks, early, dead):
        A = self.A
        out = []
        for k in range(n):
            t = f"buffer_load_dwordx4 {a_(areg + 4 * k, 4)}, {v(vO16)}, {WS}, s{sreg} offen offset:{(k & 3) * 1024} sc1"
            items = [setup(k >> 2)] if k % 4 == 0 else []
            items.append(lambda t=t, k=k: toks.__setitem__(k, A(t)))
            out.append([early, dead(k), items])
        return out

    @staticmethod
    def grp_units(items, early, dead):
        return [[early, dead, items[:2]]] + [[early, dead, [t]] for t in items[2:]]

    def spent(self, mark):
        c = 0
        for n, ln in enumerate(self.A.lines[mark:]):
            op = ln.split()[0]
            if op.endswith(":") or op.startswith(";"):
                continue
            if op.startswith("s_"):
                c += 0 if n == 0 else 4
            elif op.startswith("buffer_store") or op == "ds_write_b128":
                c += 20
            elif op.startswith(("buffer_", "v_mfma", "v_permlane", "v_exp", "v_rcp", "v_rsq")):
                c += 8
            else:
                c += 4
        return c

    def vm_slot(self, pos, cycles, mark=None, budget=24, early_ok=False):
        self.credit = min(self.credit + cycles / self.opt.get("pace", 60.0), 2.0)
        n = 0
        while n < 2:
            best = None
            for q in self.streams.values():
                if q and (early_ok or q[0][0] <= pos) and (best is None or q[0][1] < best[0][1]):
                    best = q
            if best is None:
                return
            urgent = best[0][1] - self.opt.get("lead", 24) <= pos
            its = best[0][2]
            if not callable(its[0]):
                lines = its[0].split("\n")
                while lines and (mark is None or self.spent(mark) + 4 <= budget):
                    self.A(lines.pop(0))
                if lines:
                    its[0] = "\n".join(lines)
                    return
                its.pop(0)
            if self.credit < 1.0 and not urgent:
                return
            if mark is not None and self.spent(mark) + 8 > budget and not (urgent and n == 0):
                return
            for it in best.pop(0)[2]:
                self.emit(it)
            self.credit = max(self.credit - 1.0, -1.0)
            n += 1

    def side(self, items, mark, budget=24):
        while items and self.spent(mark) + 4 <= budget:
            self.emit(items.pop(0))

    def vm_force(self, name, toks, key, whole=False):
        q = self.streams[name]
        while key not in toks or (whole and q and q[0][3:] == [key]):
            for it in q.pop(0)[2]:
                self.emit(it)
        return toks[key]

    def gu(self):
        A = self.A
        o = self.opt
        accA, accB, csa, sel = 64, 128, 224, 228
        mA = 250
        npre = 4 * self.nres
        if npre:
            A("s_barrier")
            tk = {}
            for k in range(npre + 4):
                if k < npre:
                    base = (k >> 2 & 3) * SLOT + (k & 3) * 2048
                    for j in range(2):
                        tk[k] = A(f"ds_read_b64_tr_b16 {v(192 + 4 * (k & 7) + 2 * j, 2)}, {v(vGU + (4 if k >= 16 else 0))} offset:{base + j * 1024}")
                if k >= 4:
                    A.wait(tk[k - 4])
                    A(f"{MF16} {v(csa, 4)}, {v(sel, 4)}, {v(192 + 4 * (k - 4 & 7), 4)}, {v(csa, 4) if k > 4 else '0'}")
            rt = {}
            for n in range(4):
                for j in range(2):
                    rt[n] = A(f"ds_read_b64_tr_b16 {v(192 + 4 * n + 2 * j, 2)}, {v(vGU + n)} offset:{j * 1024}")
        self.poll(vT + 5)
        self.stamp("hpoll")
        A(f"s_cmp_ge_u32 {s(sC)}, 28\ns_cbranch_scc1 L_spare")
        h1, h2, self.he, self.hl, stt = {}, {}, {}, {}, {}
        INF, DN0 = 10 ** 6, 272
        cA, bA, bB = 232, 242, 246
        J, tA, tB = 4 * o.get("split", 4), o.get("tailA", 4), o.get("tail", 4)
        seq, fr = [], []
        for k in range(J):
            for cp in range(4):
                seq += [(0, k, cp), (1, k, cp)]
                fr += [4 * k + cp] * 2
        for t, tl in ((0, tA), (1, tB)):
            part = [(t, k, cp) for k in range(J, 32 - tl) for cp in range(4)] + [(t, k, cp) for cp in range(4) for k in range(32 - tl, 32)]
            fr += [len(set(fr)) + n for n in range(len(part))]
            seq += part
        first_use = {}
        for n, f in enumerate(fr):
            first_use.setdefault(f, n)
        hfirst = lambda t: (lambda k: min(n for n, e in enumerate(seq) if e[:2] == (t, k)))
        lastuse = {j: max(n for n, e in enumerate(seq) if e[1] >> 2 == j) for j in range(8)}
        lastacc = {(t, cp): max(n for n, e in enumerate(seq) if (e[0], e[2]) == (t, cp)) for t in range(2) for cp in range(4)}
        wreg = lambda f: 192 + 4 * (f & 7)

        rot = lambda base, reg: (lambda j: f"s_xor_b32 s{reg}, s{base}, {j << 12}")
        late = list(range(self.nres, 8))
        span = hfirst(0)(28) - o.get("glead", 28)
        for n, u in enumerate(self.guq):
            u[0] = min(span / max(len(self.guq), 1), o.get("gpace", 7)) * n
        dma = []
        for st in range(14):
            early = 0 if st == 0 else INF if st <= 8 else DN0 + 8 * (st - 8) + 4
            dma += [u + [("d", st)] for u in self.grp_units(self.dn_dma(st), early, DN0 + 8 * st - o.get("dlead", 30))]
        pc = lastacc[(0, 0)]
        s0 = pc - o.get("stat_lead", 60)
        self.streams = {
            "h1": self.frag_stream(32, 0, 70, rot(97, 70), h1, 0, hfirst(0)),
            "h2": self.frag_stream(32, 128, 71, rot(98, 71), h2, 0, hfirst(1)),
            "gu": self.guq, "dma": dma,
            "stats": self.grp_units(self.stats_loads(sTA, cA, stt, 0, 2), 0, s0) + self.grp_units(self.stats_loads(sTBB, cA, stt, 1, 2), INF, s0 + 30),
            "he": self.frag_stream(28, 0, 70, lambda j: self.rot7(70, j, 13, 81), self.he, INF, lambda k: DN0 + 2 * k),
            "hl": self.frag_stream(28, 128, 71, lambda j: self.rot7(71, j, 13, 82), self.hl, INF, lambda k: DN0 + 56 + 2 * k),
        }
        self.credit = 0.0
        for n in range(o.get("h_burst", 8)):
            if J:
                self.vm_force(("h1", "h2")[n & 1], (h1, h2)[n & 1], n >> 1)
            else:
                self.vm_force("h1", h1, n)

        def force_group(kind, idx, toks):
            q = self.streams["dma" if kind == "d" else "gu"]
            while any(u[3] == (kind, idx) for u in q):
                for it in q.pop(0)[2]:
                    self.emit(it)
            return toks[idx]
        self.force_group = force_group

        def barrier(n):
            A("s_barrier")
            for u in dma:
                st = u[3][1]
                if 1 <= st <= 8 and lastuse[st - 1] <= n:
                    u[0] = 0

        def force_stats(n):
            q = self.streams["stats"]
            while len(q) > 2 - 2 * n:
                for it in q.pop(0)[2]:
                    self.emit(it)
            A.wait(stt[n])

        def open_stats():
            for u in self.streams["stats"]:
                u[0] = 0

        state, stB, cst = {}, {}, {}
        ev = {}
        at = lambda n, f: ev.setdefault(n, []).append(f)
        items = []
        at(s0, lambda n: items.extend([lambda: force_stats(0)] + self.stats_reduce(cA, mA) + [open_stats] + self.split_mean(mA, bA)))
        at(s0 + 30, lambda n: items.extend([lambda: force_stats(1)] + self.stats_reduce(cA, mA) + self.split_mean(mA, bB) +
                                           [f"v_mov_b32 {v(cA + r)}, 0" for r in (1, 3, 5, 7)]))
        at(pc + 2, lambda n: items.extend(
            [f"v_and_b32 {v(csa + 1)}, s66, {v(csa)}", f"v_sub_f32 {v(csa)}, {v(csa)}, {v(csa + 1)}", f"v_cvt_pk_bf16_f32 {v(csa)}, {v(csa + 1)}, {v(csa)}",
             lambda: cst.__setitem__("w", A(f"ds_write_b32 {v(vT + 9)}, {v(csa)}"))] +
            [f"v_xor_b32 {v(csa + cp)}, {cp << 7}, {v(vT + 9)}" for cp in range(1, 4)]))

        def cs_reads(n):
            assert not items
            A.wait(cst["w"])
            barrier(n)
            for cp in range(4):
                cst["r"] = A(f"ds_read_b32 {v(cA + 2 * cp)}, {v(csa + cp) if cp else v(vT + 9)}")
        at(pc + 6, cs_reads)
        fix = lambda acc, b: [f"{MF32} {v(acc + 16 * cp, 16)}, {v(cA + 2 * cp, 4)}, {v(b, 4)}, {v(acc + 16 * cp, 16)}" for cp in range(4)]
        pf = pc + 10
        extra = {pf: fix(accA, bA), max(pf + 8, hfirst(1)(0) + 8): fix(accB, bB)}
        epA, epB = self.gu_epilogue(accA, 87, state), self.gu_epilogue(accB, 88, stB)
        pe = 0
        for cp in range(4):
            pe = max(lastacc[(0, cp)] + 3, pf + 2, pe + o.get("st_gap", 4))
            at(pe, lambda n, cp=cp: items.extend(epA[14 * cp:14 * cp + 14]))
            if lastacc[(1, cp)] + 3 < 256:
                at(lastacc[(1, cp)] + 3, lambda n, cp=cp: items.extend(epB[14 * cp:14 * cp + 14]))
        restB = sum((epB[14 * cp:14 * cp + 14] for cp in range(4) if lastacc[(1, cp)] + 3 >= 256), [])

        def chk(n):
            self.poll_check(state["p"], vT + 7, vT + 10)
            self.stamp("hepoll")
            for u in self.streams["he"]:
                u[0] = 0
        pp = pe + 5 + o.get("pub_lag", 20)
        chain = [(pp, lambda n: self.publish([state["st"]], "s89")),
                 (pp + o.get("poll_lag", 12), lambda n: state.__setitem__("p", self.poll_issue(vT + 7, vT + 10))),
                 (pp + o.get("poll_lag", 12) + o.get("chk_lag", 16), chk)]
        for n, f in chain:
            at(n, f)
        for j in range(8):
            if j >= r_from(J) and lastuse[j] + 1 < 256 - 4 * tB + 2:
                at(lastuse[j] + 1, barrier)

        nread = [4]

        def reads(n):
            while nread[0] in first_use and first_use[nread[0]] <= n + 4:
                f = nread[0]
                _, k, cp = seq[first_use[f]]
                if k >> 2 in late:
                    late.remove(k >> 2)
                    A.wait(force_group("g", k >> 2, self.gtok))
                    barrier(n)
                base = (k >> 2 & 3) * SLOT + (k & 3) * 2048
                for j in range(2):
                    rt[f] = A(f"ds_read_b64_tr_b16 {v(wreg(f) + 2 * j, 2)}, {v(vGU + (4 if k >= 16 else 0) + cp)} offset:{base + j * 1024}")
                nread[0] += 1

        def need(n):
            t, k, cp = seq[n]
            return [rt[fr[n]], self.vm_force(("h1", "h2")[t], (h1, h2)[t], k)]

        A.wait(*need(0))
        for n in range(256):
            t, k, cp = seq[n]
            acc = (accA, accB)[t] + 16 * cp
            A(f"{MF32} {v(acc, 16)}, {v(wreg(fr[n]), 4)}, {a_(128 * t + 4 * k, 4)}, {v(acc, 16) if k else '0'}")
            mark = len(A.lines)
            if n < 255:
                A.wait(*need(n + 1))
            for f in ev.pop(n, []):
                f(n)
            reads(n)
            cs = t == 0 and cp == 0 and k >= npre
            self.vm_slot(n, 48 if cs else 32, mark)
            self.side(items, mark)
            if cs:
                A(f"{MF16} {v(csa, 4)}, {v(sel, 4)}, {v(wreg(fr[n]), 4)}, {v(csa, 4) if k else '0'}")
                self.side(items, len(A.lines), 8)
            for m in extra.get(n, ()):
                A.wait(cst["r"])
                A(m)
                mark = len(A.lines)
                self.vm_slot(n, 32, mark)
                self.side(items, mark)
            if n % 16 == 15 or n == 0:
                self.stamp(f"a{n}", "gu")
            if n == 127:
                self.stamp("gu1")
        self.stamp("gu2")
        barrier(256)
        for it in items + restB:
            self.emit(it)
            self.vm_slot(256, o.get("epi_cyc", 4.5))
        for n in sorted(ev):
            for f in ev[n]:
                f(n)
        self.vm_force("he", self.he, o.get("he_burst", 8) - 1)
        self.m0_owner = None
        self.left = {}
        for name in ("he", "dma"):
            q = self.streams[name]
            head = q[0][2][0] if q else None
            self.left[name] = (len(q), 0 if head is None or callable(head) else len(head.split("\n")))
        self.n_dn = 14 - (self.left["dma"][0] + 3) // 4
        self.sttok = stB["st"]
        self.stamp("gupub")
        A.label("L_down")

    def spare(self):
        A = self.A
        A.label("L_spare")
        self.m0_owner = None
        A("s_waitcnt lgkmcnt(0)\ns_barrier")
        if self.opt.get("spare_warm", 2) == 2:
            self.spare_warm()
        ln = self.lab("ne")
        A(f"s_cmp_lg_u32 s2, 248\ns_cbranch_scc1 {ln}\ns_cmp_lg_u32 {s(sW)}, 0\ns_cbranch_scc1 {ln}")
        for q in range(4):
            A(f"v_and_b32 {v(vT + 2)}, 31, {v(vL)}\nv_lshrrev_b32 {v(vT + 3)}, 5, {v(vL)}\nv_lshlrev_b32 {v(vT + 2)}, 8, {v(vT + 2)}")
            A(f"v_lshl_add_u32 {v(vT + 2)}, {v(vT + 3)}, 14, {v(vT + 2)}\nv_add_u32 {v(vT + 2)}, {WS_KVF + q * 32768}, {v(vT + 2)}")
            self.poll(vT + 2, acquire=False)
        A(f"s_mov_b32 s63, {WS_E}")
        A(f"buffer_store_dword {v(vTAG)}, off, {WS}, s63 sc1")
        A.label(ln)
        if self.opt.get("spare_pf", 0):
            A(f"s_and_b32 s63, {s(sC)}, 3\ns_lshl_b32 s63, s63, 2\ns_add_u32 s63, s63, {s(sW)}")
            A(f"s_and_b32 s73, s63, 7\ns_lshl_b32 s73, s73, 13\ns_lshr_b32 s63, s63, 3\ns_mul_i32 s63, s63, {14 * 65536}\ns_add_u32 s73, s73, s63")
            A(f"v_lshlrev_b32 {v(vT + 2)}, 7, {v(vL)}")
            for n in range(14):
                A(f"buffer_load_dword {v(vJ)}, {v(vT + 2)}, {WD}, s73 offen\ns_add_u32 s73, s73, 65536")
        def claim(ph):
            A(f"s_and_b32 s63, {s(sC)}, 3\ns_lshl2_add_u32 s63, s63, {s(sW)}\ns_lshr_b32 s73, s63, 1\ns_lshr_b32 s74, s73, 2\ns_xor_b32 s74, s74, {ph}")
            A(f"s_lshl3_add_u32 s73, {s(sG)}, s73\ns_mul_i32 s73, s73, 114688\ns_and_b32 s63, s63, 1\ns_mul_i32 s63, s63, 14\ns_add_u32 s63, s63, s74")
            A(f"s_lshl_b32 s63, s63, 12\ns_add_u32 s73, s73, s63\ns_add_u32 s73, s73, {WS_HH}")
            A(f"v_and_b32 {v(vT + 2)}, 31, {v(vL)}\nv_lshrrev_b32 {v(vT + 3)}, 5, {v(vL)}\nv_lshlrev_b32 {v(vT + 2)}, 7, {v(vT + 2)}\nv_lshl_add_u32 {v(vT + 3)}, {v(vT + 3)}, 13, {v(vT + 2)}")
            for n in range(4):
                A(f"buffer_load_dword {v(vJ)}, {v(vT + (3 if n < 3 else 2))}, {WS}, s73 offen sc1\ns_add_u32 s73, s73, 16384")
        cl = self.opt.get("claim", 0)
        if cl & 1:
            claim(0)
        if cl & 2:
            claim(1)

        def replay(units, name):
            n, lines = self.left[name]
            for u in units[:len(units) - n]:
                for it in u[2]:
                    self.emit(it)
            if n and not callable(units[-n][2][0]):
                su = units[-n][2][0].split("\n")
                for t in su[:len(su) - lines]:
                    A(t)
        replay(sum((self.grp_units(self.dn_dma(st), 0, 0) for st in range(14)), []), "dma")
        if cl & 4:
            claim(1)
        self.poll(vT + 7)
        replay(self.frag_stream(28, 0, 70, lambda j: self.rot7(70, j, 13, 81), {}, 0, lambda k: 0), "he")
        A("s_waitcnt vmcnt(0)\ns_branch L_down")

    def dn_reads(self, k):
        wf = 192 + 8 * (k & 3)
        st, ks = k >> 2, k & 3
        slot = (8 + st) % 9
        rng = slot >> 2
        base = (slot & 3) * SLOT + ks * 2048
        return [f"ds_read_b64_tr_b16 {v(wf + 4 * ct + 2 * j, 2)}, {v(vDN + 2 * rng + ct)} offset:{base + j * 1024}" for ct in range(2) for j in range(2)]

    def down(self):
        A = self.A
        o = self.opt
        aK, aS, rc, mD, DN0 = 64, 80, 96, 252, 272
        A.wait(self.dntok[0])
        A("s_barrier")
        seen = max(st for st in range(self.n_dn) if A.covered(self.dntok[st]))
        dt = o.get("dn_tail", 8)
        seq = [(k, ct) for k in range(56 - dt) for ct in (1, 0)] + [(k, ct) for ct in (1, 0) for k in range(56 - dt, 56)]
        wreg = lambda n: 192 + 4 * (n & 7)
        rt = {}

        def reads(n):
            k, ct = seq[n]
            slot = (8 + (k >> 2)) % 9
            for j in range(2):
                rt[n] = A(f"ds_read_b64_tr_b16 {v(wreg(n) + 2 * j, 2)}, {v(vDN + 2 * (slot >> 2) + ct)} offset:{(slot & 3) * SLOT + (k & 3) * 2048 + j * 1024}")
        for n in range(4):
            reads(n)
        stt = {}
        self.streams["stats"] = self.grp_units(self.stats_loads(sT, 232, stt, 0, 4), 0, DN0 + o.get("dstat", 100))
        for u in self.streams["hl"]:
            u[1] = min(u[1], DN0 + 2 * (56 - dt) + (u[1] - DN0) // 2 - (56 - dt))
        lb = o.get("late_pub", 8)
        lp, lc = lb + o.get("late_issue", 5), lb + o.get("late_check", 11)
        hneed = lambda k: self.vm_force("he", self.he, k) if k < 28 else self.vm_force("hl", self.hl, k - 28)
        hf = lambda k: a_(4 * k, 4) if k < 28 else a_(128 + 4 * (k - 28), 4)
        items = []
        st8 = {"seen": seen, "step": 0}

        def mfma(n):
            k, ct = seq[n]
            acc = aS if ct else aK
            A(f"{MF32} {v(acc, 16)}, {v(wreg(n), 4)}, {hf(k)}, {v(acc, 16) if k else '0'}")
            mark = len(A.lines)
            if n + 1 < 112:
                A.wait(rt[n + 1], hneed(seq[n + 1][0]))
            if n + 4 < 112:
                st = seq[n + 4][0] >> 2
                if st > st8["step"]:
                    st8["step"] = st
                    if st > st8["seen"]:
                        A.wait(self.force_group("d", st, self.dntok))
                    if st > st8["seen"] or (st >= 2 and st + 7 < 14):
                        A("s_barrier")
                        st8["seen"] = max(x for x in range(14) if x in self.dntok and A.covered(self.dntok[x]))
            if n == 2 * lb:
                ls = self.lab("np")
                A.wait(self.sttok)
                A(f"s_cmp_ge_u32 {s(sC)}, 28\ns_cbranch_scc1 {ls}")
                self.publish([], "s90")
                A.vm_issued -= 1
                A.label(ls)
            if n == 2 * lp:
                st8["p"] = self.poll_issue(vT + 8, vT + 10)
            if n == 2 * lc:
                self.poll_check(st8["p"], vT + 8, vT + 10)
                self.stamp("hlpoll")
                for u in self.streams["hl"]:
                    u[0] = 0
            if n + 4 < 112:
                reads(n + 4)
            self.vm_slot(DN0 + n, o.get("dn_cyc", 40), mark)
            self.side(items, mark)
            if n % 8 == 7:
                self.stamp(f"d{n // 2}", "dn")

        A.wait(rt[0], hneed(0))
        for n in range(112 - dt):
            if n == 112 - 2 * dt:
                while self.streams["stats"]:
                    for it in self.streams["stats"].pop(0)[2]:
                        self.emit(it)
                items += self.pair_setup()
                items += [f"v_and_b32 {v(vT + 4)}, 31, {v(vL)}", f"v_lshrrev_b32 {v(vT + 5)}, 5, {v(vL)}", f"v_lshlrev_b32 {v(vT + 4)}, 10, {v(vT + 4)}",
                          f"v_lshl_add_u32 {v(vT + 4)}, {v(vT + 5)}, 4, {v(vT + 4)}", lambda: A.wait(stt[0])]
                for ta, tb in zip(self.stats_reduce(232, mD), self.stats_reduce(240, mD + 1)):
                    items += [ta, tb]
                items += [f"v_fma_f32 {v(mD + 1)}, -{v(mD)}, {v(mD)}, {v(mD + 1)}", f"v_max_f32 {v(mD + 1)}, 0, {v(mD + 1)}",
                          f"v_add_f32 {v(mD + 1)}, s68, {v(mD + 1)}", f"v_rcp_f32 {v(mD)}, {v(mD + 1)}"]
            mfma(n)
        assert not any(self.streams.values())
        toks = self.pair_exchange(aS, rc, [(lambda n=n: mfma(n)) for n in range(112 - dt, 112)])
        for it in items:
            self.emit(it)
        self.stamp("dnmm")
        pk = 112
        for hh in range(2):
            A.wait(toks[2 * hh + 1])
            for k in range(4 * hh, 4 * hh + 4):
                A(f"v_pk_add_f32 {v(aK + 2 * k, 2)}, {v(aK + 2 * k, 2)}, {v(rc + 2 * k, 2)}")
            for k in range(4 * hh, 4 * hh + 4):
                A(f"v_pk_fma_f32 {v(aK + 2 * k, 2)}, {v(aK + 2 * k, 2)}, {v(mD, 2)}, {v(vH + 2 * k, 2)} op_sel_hi:[1,0,1]")
            for k in range(4 * hh, 4 * hh + 4):
                A(f"v_cvt_pk_bf16_f32 {v(pk + k)}, {v(aK + 2 * k)}, {v(aK + 2 * k + 1)}")
            A(f"v_permlane32_swap_b32 {v(pk + 4 * hh)}, {v(pk + 4 * hh + 2)}\nv_permlane32_swap_b32 {v(pk + 4 * hh + 1)}, {v(pk + 4 * hh + 3)}")
            A(f"buffer_store_dwordx4 {v(pk + 4 * hh, 4)}, {v(vT + 4)}, {OUT}, s20 offen offset:{hh * 32}{o.get('out_fl', ' sc1')}")
        self.stamp("end")

    def build(self):
        A = self.A
        k = NAME + "_kernel"
        self.prologue()
        self.ln1()
        self.qkv()
        self.attention()
        self.wo()
        self.gu()
        self.down()
        self.finish_kernel()
        self.spare()
        self.emit_tail()
        self.truemax()
        A.label("L_exit")
        A("s_endpgm")
        body = A.finish(verbose=self.opt.get("verbose", False))
        ref = open(f"cdna_kernels/{NAME}.s.ref").read().split("\n") if not self.listform else []
        head = [ln for ln in ref if ln.startswith(";") and "@launch" not in ln and "Override" not in ln and "grid=ceil" not in ln]
        launch = f"; @launch {'kernel=' + k + ' ' if self.listform else ''}grid=(256,1,1) block=(256,1,1) lds=163840"
        return "\n".join(head + [launch, '.amdgcn_target "amdgcn-amd-amdhsa--gfx950"', ".text", f".globl {k}", ".p2align 8",
                                 f".type {k},@function", f"{k}:", body,
                                 "; padding: the text prefetch at entry reads 41 KiB from the kernel start",
                                 f".fill {self.opt.get('padw', 2560)}, 4, 0xbf800000",
                                 '.section .rodata,"a"', ".p2align 6", f".amdhsa_kernel {k}",
                                 "  .amdhsa_next_free_vgpr 512", "  .amdhsa_next_free_sgpr 102", "  .amdhsa_accum_offset 256",
                                 "  .amdhsa_group_segment_fixed_size 0", "  .amdhsa_kernarg_size 80", "  .amdhsa_user_sgpr_count 2",
                                 "  .amdhsa_user_sgpr_kernarg_segment_ptr 1", "  .amdhsa_system_sgpr_workgroup_id_x 1",
                                 ".end_amdhsa_kernel", ""])


if __name__ == "__main__":
    g = Gen(opt={"verbose": "-v" in sys.argv})
    txt = g.build()
    out = f"cdna_kernels/{NAME}.s"
    open(out, "w").write(txt)
    print("wrote", out, len(txt), "bytes; hazard pad states", g.A.pad_states)
```

```python
import sys
from asmlib import Asm

NAME = "sequential_preLN__sliding_block__glu_gated_bilinear__prompt"

OWN = 0x200000
WS_E = 0x0
WS_KV, WS_O, WS_H, WS_HH = OWN, OWN + 0x80000, OWN + 0xC0000, OWN + 0x100000
WS_ST, WS_KVF, WS_OF, WS_HF, WS_HHF = OWN + 0x1E0000, OWN + 0x1E8000, OWN + 0x1EC000, OWN + 0x1EC400, OWN + 0x1EC800
WS_SIZE = WS_DBG = 9 * OWN
TAG_STEP = 0x9E3779B0
SLOT = 16384
XB = 5 * SLOT
XROW = 1040
XKV, XQ = 2 * SLOT, 9 * SLOT + 8192
CONST, MTAB = 149504, 150016
RED = 9 * SLOT
ONES = 0x3F803F80
NEG = 0xFF800000
SPIN_MAX = 1 << 18

sW, sG, sC, sTB, sHQ, sB, sTAG, sFAST, sTT, sHP = 3, 4, 5, 6, 7, 8, 9, 10, 11, 12
sW4K, sENT, sT = 13, 14, 15
sPAR, sTA, sTBB, sE = 16, 17, 18, 19
X, WQ, WO, WGU, WD, OUT, WS = "s[24:27]", "s[28:31]", "s[32:35]", "s[36:39]", "s[40:43]", "s[44:47]", "s[48:51]"
vL, vO16 = 0, 1
vD3072, vD3584, vD1024 = 2, 6, 10
vXA, vWA = 14, 15
vGU = 17
vDN = 25
vST = 31
vH = 32
vTAG, vJ = 48, 49
vT = 50


def v(a, n=1):
    return f"v{a}" if n == 1 else f"v[{a}:{a + n - 1}]"


def a_(a, n=1):
    return f"a{a}" if n == 1 else f"a[{a}:{a + n - 1}]"


def s(a, n=1):
    return f"s{a}" if n == 1 else f"s[{a}:{a + n - 1}]"


def r_from(J):
    return max(J // 4 - 1, 0)


MF32 = "v_mfma_f32_32x32x16_bf16"
MF16 = "v_mfma_f32_16x16x32_bf16"


class Gen:
    def __init__(self, stamps=False, stop=None, listform=False, force_slow=False, force_fb=False, opt=None):
        self.A = Asm()
        self.stamps, self.stop, self.listform = stamps, stop, listform
        self.force_slow, self.force_fb = force_slow, force_fb
        self.opt = opt or {}
        self.nlab = 0
        self.stamp_names = []
        self.tail = []
        self.m0_owner = None
        self.priv = self.opt.get('priv', 0)
        self.wr = self.opt.get('wr', 0)
        self.ohs = ' sc1' if self.opt.get('oh_sc1', 1) and not self.priv and not self.wr else ''

    def lab(self, p):
        self.nlab += 1
        return f"L_{p}{self.nlab}"

    def stamp(self, name, fine=None):
        if self.opt.get("probe") == name:
            self.A("s_memrealtime s[92:93]\ns_waitcnt lgkmcnt(0)")
        if not self.stamps:
            return
        want = self.opt.get("fine")
        if fine is not None and fine != want:
            return
        if fine is None and want and name not in self.opt.get("keep", ("ln1", "kvst", "attn", "hpoll", "gu1", "gu2", "gupub", "dnmm", "end")):
            return
        i = len(self.stamp_names)
        self.stamp_names.append(name)
        self.A(f"s_memtime s[78:79]\ns_memrealtime s[92:93]\ns_waitcnt lgkmcnt(0)\nv_writelane_b32 {v(vST)}, s78, {i}\nv_writelane_b32 {v(vST)}, s92, {i + 30}")

    def dma4(self, vbase, srd, soff, slot):
        A = self.A
        A(f"s_add_u32 m0, {s(sW4K)}, {slot * SLOT}")
        return [f"buffer_load_dwordx4 {v(vbase + i)}, {srd}, {soff} offen offset:{i * 1024} lds" for i in range(4)]

    def publish(self, toks, soff):
        A = self.A
        lf, ld = self.lab("pf"), self.lab("pd")
        A.wait(*toks)
        A(f"s_cmp_lg_u32 {s(sFAST)}, 0\ns_cbranch_scc1 {lf}")
        A.raw("buffer_wbl2 sc1")
        A.raw("s_waitcnt vmcnt(0)")
        A.raw(f"buffer_store_dword {v(vTAG)}, off, {WS}, {soff} sc1")
        A(f"s_branch {ld}")
        A.label(lf)
        A(f"buffer_store_dword {v(vTAG)}, off, {WS}, {soff}")
        A.label(ld)

    def poll(self, vaddr, acquire=True):
        A = self.A
        lp, ld = self.lab("poll"), self.lab("pollx")
        A("s_mov_b32 s60, 0")
        A.label(lp)
        A(f"buffer_load_dword {v(vT)}, {v(vaddr)}, {WS}, 0 offen sc1")
        A(f"s_add_u32 s60, s60, 1\ns_cmp_gt_u32 s60, {SPIN_MAX}\ns_waitcnt vmcnt(0)\ns_cbranch_scc1 {ld}")
        A(f"v_xor_b32 {v(vT + 1)}, {v(vT)}, {v(vTAG)}\nv_cmp_lt_u32 vcc, 15, {v(vT + 1)}\ns_cbranch_vccnz {lp}")
        A.label(ld)
        if acquire:
            self.acquire()

    def poll_issue(self, vaddr, dst):
        return self.A(f"buffer_load_dword {v(dst)}, {v(vaddr)}, {WS}, 0 offen sc1")

    def poll_check(self, tok, vaddr, dst):
        A = self.A
        ls, lb = self.lab("spin"), self.lab("back")
        A.wait(tok)
        A(f"v_xor_b32 {v(dst)}, {v(dst)}, {v(vTAG)}\nv_cmp_lt_u32 vcc, 15, {v(dst)}")
        A(f"s_cmp_eq_u32 {s(sFAST)}, 0\ns_cbranch_scc1 {ls}\ns_cbranch_vccnz {ls}")
        A.label(lb)
        self.tail.append((ls, lb, vaddr, None))

    def emit_tail(self):
        for ls, lb, vaddr, keep in self.tail:
            self.A.label(ls)
            self.poll(vaddr, acquire=keep is None)
            if keep is not None:
                self.A(f"v_mov_b32 {v(keep)}, {v(vT)}")
            self.A(f"s_branch {lb}")

    def acquire(self):
        A = self.A
        lf = self.lab("aq")
        A(f"s_cmp_lg_u32 {s(sFAST)}, 0\ns_cbranch_scc1 {lf}")
        A.raw("buffer_inv sc1")
        A.raw("s_waitcnt vmcnt(0)")
        A.label(lf)

    def finish_kernel(self):
        A = self.A
        if self.stamps:
            A("s_memrealtime s[78:79]\ns_waitcnt lgkmcnt(0)")
            A(f"v_writelane_b32 {v(vST)}, s78, 63\nv_writelane_b32 {v(vST)}, s76, 62\nv_writelane_b32 {v(vST)}, {s(sFAST)}, 61")
            A(f"s_lshl_b32 s60, s2, 2\ns_add_u32 s60, s60, {s(sW)}\ns_lshl_b32 s60, s60, 8\ns_add_u32 s60, s60, {WS_DBG}\ns_lshl_b32 s61, {s(sG)}, 21\ns_sub_u32 s60, s60, s61")
            A(f"v_lshlrev_b32 {v(vT)}, 2, {v(vL)}")
            A(f"buffer_store_dword {v(vST)}, {v(vT)}, {WS}, s60 offen sc1")
        if self.opt.get("probe"):
            A("s_waitcnt vmcnt(0)\ns_sub_u32 s92, s92, s76\ns_lshl_b32 s92, s92, 2\ns_add_u32 s92, s92, 4000")
            A.label("L_cal")
            A("s_memrealtime s[78:79]\ns_waitcnt lgkmcnt(0)\ns_sub_u32 s78, s78, s76\ns_cmp_lt_u32 s78, s92\ns_cbranch_scc1 L_cal")
        A("s_endpgm")

    def prologue(self):
        A = self.A
        o = self.opt
        t0, t1, t2, t3 = vT, vT + 1, vT + 2, vT + 3
        A("s_load_dwordx2 s[24:25], s[0:1], 0\ns_load_dwordx2 s[28:29], s[0:1], 8\ns_load_dwordx2 s[32:33], s[0:1], 16")
        if self.stamps:
            A("s_memrealtime s[76:77]\ns_memtime s[92:93]")
        if o.get("probe"):
            A("s_memrealtime s[76:77]\ns_memrealtime s[92:93]")
        A("s_cmp_ge_u32 s2, 256\ns_cbranch_scc1 L_exit")
        A(f"s_getpc_b64 s[60:61]\ns_lshr_b32 {s(sC)}, s2, 3\nv_min_u32 {v(t1)}, 9, v0\ns_mul_i32 s62, {s(sC)}, 1280")
        A(f"v_lshl_add_u32 {v(t1)}, {v(t1)}, 7, s62\nv_lshrrev_b32 {v(t0)}, 6, v0")
        A(f"global_load_dword {v(vJ)}, {v(t1)}, s[60:61]")
        A(f"v_readfirstlane_b32 {s(sW)}, {v(t0)}\nv_and_b32 {v(vL)}, 63, v0")
        A(f"s_and_b32 {s(sG)}, s2, 7\ns_and_b32 {s(sTB)}, {s(sC)}, 3\ns_lshr_b32 {s(sHQ)}, {s(sC)}, 2\ns_xor_b32 {s(sHQ)}, {s(sHQ)}, {o.get('hqx', 4)}")
        A(f"s_lshl2_add_u32 {s(sB)}, {s(sG)}, {s(sTB)}\ns_lshl2_add_u32 s62, {s(sB)}, {s(sW)}\ns_lshl_b32 s62, s62, 14")
        A(f"s_lshl_b32 s94, {s(sHQ)}, 7\ns_or_b32 s62, s62, s94")
        A(f"v_lshrrev_b32 {v(t0)}, 3, {v(vL)}\nv_and_b32 {v(t1)}, 7, {v(vL)}")
        A(f"v_lshlrev_b32 {v(t2)}, 10, {v(t0)}\nv_lshl_add_u32 {v(vT + 4)}, {v(t1)}, 4, {v(t2)}\nv_add_u32 {v(vT + 5)}, 8192, {v(vT + 4)}")
        A(f"s_mov_b32 s26, {2048 * 1024}\ns_mov_b32 s27, 0x20000")
        A(f"s_lshl2_add_u32 s95, s2, {s(sW)}\nv_lshlrev_b32 {v(vT + 9)}, 7, {v(vL)}")
        A("s_waitcnt lgkmcnt(0)")
        self.xtok = []
        self.xload(0)
        self.xload(1)
        nx = o.get("nx0", 10)
        for i in range(2, nx):
            self.xload(i)
        A("s_load_dwordx2 s[60:61], s[0:1], 72\ns_load_dwordx4 s[52:55], s[0:1], 32\ns_load_dwordx4 s[56:59], s[0:1], 48")
        if self.stamps:
            self.stamp_names.append("start")
            A(f"v_mov_b32 {v(vST)}, 0")
            A(f"v_writelane_b32 {v(vST)}, s92, 0\nv_writelane_b32 {v(vST)}, s76, 30")
            self.stamp("karg")
        A(f"s_and_b32 {s(sTT)}, {s(sW)}, 1\ns_lshr_b32 {s(sHP)}, {s(sW)}, 1\ns_lshl_b32 {s(sW4K)}, {s(sW)}, 12")
        A(f"s_lshl1_add_u32 {s(sT)}, {s(sTB)}, {s(sTT)}")
        r1 = o.get("rot_s1", "g")
        A({"tb": f"s_lshl_b32 s96, {s(sTB)}, 1", "g": f"s_mov_b32 s96, {s(sG)}", "gt": f"s_and_b32 s96, {s(sTB)}, 1\ns_xor_b32 s96, s96, {s(sG)}"}[r1])
        A("s_lshr_b32 s85, s96, 1")
        for srd, size in ((28, 512 * 3072), (32, 512 * 1024), (40, 1792 * 1024), (44, 2048 * 1024),
                          (48, WS_SIZE + (0x100000 if self.stamps else 0))):
            A(f"s_mov_b32 s{srd + 2}, {size}\ns_mov_b32 s{srd + 3}, 0x20000")
        A("s_mov_b32 s39, 0x20000")
        A(f"v_lshlrev_b32 {v(vO16)}, 4, {v(vL)}")
        A(f"v_lshrrev_b32 {v(t2)}, 2, {v(vL)}\nv_and_b32 {v(t2)}, 4, {v(t2)}\nv_xor_b32 {v(t2)}, {v(t2)}, {v(t1)}\nv_lshlrev_b32 {v(t2)}, 4, {v(t2)}")
        A(f"v_mul_u32_u24 {v(t3)}, 3072, {v(t0)}\nv_add_u32 {v(vD3072)}, {v(t3)}, {v(t2)}")
        for i in range(1, 4):
            A(f"v_add_u32 {v(vD3072 + i)}, {i * (8 * 3072 - 1024)}, {v(vD3072)}")
        A(f"s_mul_i32 s64, {s(sTT)}, {32 * 3072}\ns_lshl_b32 s63, {s(sHP)}, 10\ns_add_u32 s64, s64, s63")
        A(f"s_add_u32 s64, s64, s94\ns_add_u32 s64, s64, 1024")
        A(f"s_and_b32 s65, s96, 1\ns_lshl_b32 s65, s65, 1\ns_xor_b32 s65, s65, {s(sW)}\ns_mul_i32 s65, s65, {32 * 3072}\ns_add_u32 s65, s65, s94")
        self.dtok = {}
        A("s_waitcnt lgkmcnt(0)")
        A(f"s_load_dword {s(sTAG)}, s[60:61], {WS_E}")
        A(f"s_lshl_b32 s63, {s(sG)}, 21\ns_add_u32 s48, s60, s63\ns_addc_u32 s49, s61, 0")
        A(f"s_mov_b32 s40, s56\ns_mov_b32 s41, s57\ns_mov_b32 s44, s58\ns_mov_b32 s45, s59")
        A(f"s_cmp_eq_u32 {s(sHP)}, 0\ns_cselect_b32 s36, s52, s54\ns_cselect_b32 s37, s53, s55")
        A(f"s_cmp_lt_u32 {s(sC)}, 28\ns_cselect_b32 s38, {512 * 3584}, 0")
        A(f"v_lshlrev_b32 {v(t3)}, 10, {v(t0)}\nv_add_u32 {v(vD1024)}, {v(t3)}, {v(t2)}")
        A(f"s_lshl_b32 s63, {s(sHP)}, 5\nv_xor_b32 {v(t2)}, s63, {v(t2)}")
        A(f"v_mul_u32_u24 {v(t3)}, 3584, {v(t0)}\nv_add_u32 {v(vD3584)}, {v(t3)}, {v(t2)}")
        A(f"s_mul_i32 s63, {s(sW)}, {16 * XROW}\ns_add_u32 s63, s63, {XB}")
        A(f"v_mul_u32_u24 {v(t3)}, {XROW}, {v(t0)}\nv_lshl_add_u32 {v(t3)}, {v(t1)}, 4, {v(t3)}\nv_add_u32 {v(vT + 6)}, s63, {v(t3)}")
        for i in range(8):
            A(f"s_xor_b32 s63, s94, {i << 7}\nv_add_u32 {v(200 + i)}, s63, {v(vT + 6)}")
        A(f"v_and_b32 {v(t0)}, 31, {v(vL)}\nv_lshrrev_b32 {v(t1)}, 5, {v(vL)}")
        A(f"s_mul_i32 s63, {s(sTT)}, {32 * XROW}\ns_add_u32 s63, s63, {XB}")
        A(f"v_mul_u32_u24 {v(t3)}, {XROW}, {v(t0)}\nv_lshl_add_u32 {v(t3)}, {v(t1)}, 4, {v(t3)}\nv_add_u32 {v(vXA)}, s63, {v(t3)}")
        r_, pc = vT + 7, vT + 8
        A(f"v_bfe_u32 {v(r_)}, {v(vL)}, 2, 2")
        A(f"v_and_b32 {v(t0)}, 3, {v(vL)}\nv_lshlrev_b32 {v(pc)}, 3, {v(t0)}")
        A(f"v_and_b32 {v(t0)}, 8, {v(vL)}\nv_lshl_add_u32 {v(pc)}, {v(t0)}, 3, {v(pc)}")
        A(f"v_and_b32 {v(t0)}, 16, {v(vL)}\nv_lshl_add_u32 {v(pc)}, {v(t0)}, 1, {v(pc)}")
        A(f"s_lshl_b32 s63, {s(sHP)}, 6\nv_xor_b32 {v(t2)}, s63, {v(pc)}")
        A(f"v_lshl_add_u32 {v(t3)}, {v(t1)}, 3, {v(r_)}\nv_lshl_add_u32 {v(vWA)}, {v(t3)}, 7, {v(t2)}")
        A(f"v_add_u32 {v(vWA + 1)}, 0x10000, {v(vWA)}")
        L = []
        for i in range(1, 4):
            L += [f"v_add_u32 {v(vD1024 + i)}, {i * (8 * 1024 - 1024)}, {v(vD1024)}", f"v_add_u32 {v(vD3584 + i)}, {i * (8 * 3584 - 1024)}, {v(vD3584)}"]
        L += [f"v_lshl_add_u32 {v(t3)}, {v(t1)}, 2, {v(r_)}", f"v_lshlrev_b32 {v(t3)}, 7, {v(t3)}",
              f"s_lshl_b32 s69, {s(sHP)}, 13", f"v_add3_u32 {v(vDN)}, {v(t3)}, {v(t2)}, s69", f"v_xor_b32 {v(vDN + 1)}, 64, {v(vDN)}"]
        for k in (1, 2):
            L += [f"v_add_u32 {v(vDN + 2 * k)}, {k * 0x10000}, {v(vDN)}", f"v_add_u32 {v(vDN + 2 * k + 1)}, {k * 0x10000}, {v(vDN + 1)}"]
        L += [f"v_lshl_add_u32 {v(t3)}, {v(t0)}, 9, {v(t3)}"]
        for cp in range(4):
            L += [f"s_xor_b32 s69, {s(sW)}, {cp}", "s_lshl_b32 s69, s69, 5", f"v_xor_b32 {v(t2)}, s69, {v(pc)}",
                  f"v_add_u32 {v(vGU + cp)}, {v(t3)}, {v(t2)}", f"v_add_u32 {v(vGU + 4 + cp)}, 0x10000, {v(vGU + cp)}"]
        self.late_setup = L
        st = {}
        L = [f"v_bfe_u32 v147, {v(vL)}, 2, 1", f"v_and_b32 v150, 7, {v(vL)}", "v_subrev_u32 v147, 1, v147", "v_lshlrev_b32 v150, 2, v150",
             f"v_and_b32 v147, {ONES}, v147", f"v_add_u32 v150, {CONST}, v150",
             lambda: st.__setitem__(0, A("ds_write_b32 v150, v147")), f"v_mov_b32 v147, {CONST}", lambda: A.wait(st[0])]
        for j in (8, 9, 0, 1, 2, 3, 4, 5, 6, 7):
            if j < 8 and j % 2 == 0:
                L += [f"s_cmp_ge_u32 {s(sB)}, {4 - j // 2}\ns_cselect_b32 s75, 0, 16", f"s_add_u32 s75, s75, {CONST}", "v_mov_b32 v147, s75"]
            L += [f"ds_read_b128 {a_(128 + 12 * j + 4 + 4 * k, 4)}, v147" for k in range(2)]
        self.prefill = L

        def touches():
            if o.get("touch0", 2):
                A(f"s_mul_i32 s63, s95, 1536\nv_add_u32 v208, s63, {v(vT + 9)}\ns_lshl_b32 s63, s95, 9\nv_add_u32 v209, s63, {v(vT + 9)}")
                p3 = o.get("touch3", 1)
                if p3:
                    A(f"s_lshl2_add_u32 s61, {s(sC)}, {s(sW)}\ns_mul_i32 s63, s61, 12288\ns_sub_u32 s63, s63, {32768 - 384}\ns_mov_b32 exec_lo, 0")
                    A(f"v_lshl_add_u32 v208, {v(vL)}, 10, s63\ns_lshl_b32 s63, s61, 12\ns_sub_u32 s63, s63, {32768 - 384}\nv_lshl_add_u32 v209, {v(vL)}, 10, s63")
                A(f"s_mov_b32 exec_lo, {0xfff if o.get('touch0', 2) == 1 else 0}\ns_mov_b32 exec_hi, {0xfff * p3}\nglobal_load_dword {v(vJ)}, v208, s[28:29]")
                A(f"s_mov_b32 exec_lo, 15\ns_mov_b32 exec_hi, {15 * p3}\nglobal_load_dword {v(vJ)}, v209, s[32:33]\ns_mov_b64 exec, -1")
            if o.get("tlb", 0):
                A(f"v_min_u32 v208, 1, {v(vL)}\nv_lshlrev_b32 v208, 21, v208\ns_lshl_b32 s63, {s(sG)}, 18")
                A(f"buffer_load_dword {v(vJ)}, v208, {WS}, 0 offen offset:256")
                A(f"buffer_load_dword {v(vJ)}, off, {WGU}, 0\nbuffer_load_dword {v(vJ)}, off, {WD}, 0\nbuffer_load_dword {v(vJ)}, off, {OUT}, s63")
        self.pending = [(lambda i=i: self.xload(i)) for i in range(nx, 16)] + [touches]

    def xload(self, i):
        A = self.A
        if i % 2 == 0:
            A(f"s_xor_b32 s70, s62, {(i >> 1) << 7}")
        self.xtok.append(A(f"buffer_load_dwordx4 {v(68 + 8 * i, 4)}, {v(vT + 4 + (i & 1))}, {X}, s70 offen"))

    def grp(self, setup, vbase, srd, store, key):
        A = self.A
        items = [setup]
        for i in range(4):
            t = f"buffer_load_dwordx4 {v(vbase + i)}, {srd}, s91 offen offset:{i * 1024} lds"
            items.append(lambda t=t, i=i: store.__setitem__(key if i == 3 else ("part", key), A(t)))
        return items

    def grp2(self, slot, setup, sreg, vbase, srd, store, key):
        A = self.A

        def load(i):
            if self.m0_owner != (sreg, key):
                A(f"s_add_u32 m0, {s(sW4K)}, {slot * SLOT}")
                self.m0_owner = (sreg, key)
            store[key if i == 3 else ("part", key)] = A(f"buffer_load_dwordx4 {v(vbase + i)}, {srd}, s{sreg} offen offset:{i * 1024} lds")
        return [setup] + [(lambda i=i: load(i)) for i in range(4)]

    def emit(self, it):
        if callable(it):
            it()
        else:
            self.A(it)

    def s1_dma(self, n):
        m0 = f"s_add_u32 m0, {s(sW4K)}, {(n % 5) * SLOT}\n"
        if n < 8:
            su = f"s_xor_b32 s91, s96, {n}\ns_mul_i32 s91, s91, {64 * 3072}\ns_add_u32 s91, s91, s64"
        else:
            su = f"s_xor_b32 s91, s85, {n - 8}\ns_mul_i32 s91, s91, {128 * 3072}\ns_add_u32 s91, s91, s65"
        return self.grp(m0 + su, vD3072, WQ, self.dtok, n)

    def wo_dma(self, i):
        if not self.opt.get("rot_wo", 0):
            return self.grp(f"s_add_u32 m0, {s(sW4K)}, {(5 + i) * SLOT}\ns_add_u32 s91, s21, {i << 17}", vD1024, WO, self.dtok, "wo")
        su = (f"s_xor_b32 s91, {s(sTB)}, {i}\ns_lshl_b32 s61, s91, 14\ns_add_u32 s61, s61, {5 * SLOT}\n"
              f"s_add_u32 m0, {s(sW4K)}, s61\ns_lshl_b32 s91, s91, 17\ns_add_u32 s91, s91, s21")
        return self.grp(su, vD1024, WO, self.dtok, "wo")

    def ln1(self):
        A = self.A
        acc = 192
        for k in range(8):
            A(f"v_mov_b32 {v(acc + k)}, 0")
        A("s_mov_b32 s66, 0xffff0000")
        side = sum((self.s1_dma(n) for n in range(5)), [])
        for i in range(16):
            b = 64 + 8 * i
            su, sq = acc + 4 * (i & 1), acc + 4 * (i & 1) + 2
            A.wait(self.xtok[i])
            if i == 0:
                self.stamp("x0")
            if self.pending:
                for _ in range(self.opt.get("pend_rate", 2)):
                    if self.pending:
                        self.pending.pop(0)()
            elif len(side) > 25 - 5 * self.opt.get("w_stats", 2):
                if not callable(side[0]):
                    self.emit(side.pop(0))
                self.emit(side.pop(0))
            for d in range(4):
                A(f"v_lshlrev_b32 {v(b + 2 * d)}, 16, {v(b + 4 + d)}\nv_and_b32 {v(b + 2 * d + 1)}, s66, {v(b + 4 + d)}")
                A(f"v_pk_add_f32 {v(su, 2)}, {v(su, 2)}, {v(b + 2 * d, 2)}")
                A(f"v_pk_fma_f32 {v(sq, 2)}, {v(b + 2 * d, 2)}, {v(b + 2 * d, 2)}, {v(sq, 2)}")
        self.stamp("xall")
        for k in range(4):
            A(f"v_add_f32 {v(acc + 2 * k)}, {v(acc + 2 * k)}, {v(acc + 2 * k + 1)}")
        for pat in ("quad_perm:[1,0,3,2]", "quad_perm:[2,3,0,1]", "row_half_mirror"):
            for k in range(4):
                A(f"v_add_f32_dpp {v(acc + 2 * k)}, {v(acc + 2 * k)}, {v(acc + 2 * k)} {pat} row_mask:0xf bank_mask:0xf")
        A("s_mov_b32 s67, 0x3b000000\ns_mov_b32 s68, 0x3727c5ac")
        for k in (0, 4):
            A(f"v_mul_f32 {v(acc + k)}, s67, {v(acc + k)}\nv_mul_f32 {v(acc + k + 2)}, s67, {v(acc + k + 2)}")
        for k in (0, 4):
            A(f"v_fma_f32 {v(acc + k + 2)}, -{v(acc + k)}, {v(acc + k)}, {v(acc + k + 2)}")
        for k in (0, 4):
            A(f"v_max_f32 {v(acc + k + 2)}, 0, {v(acc + k + 2)}\nv_add_f32 {v(acc + k + 2)}, s68, {v(acc + k + 2)}")
        for k in (0, 4):
            A(f"v_rsq_f32 {v(acc + k + 2)}, {v(acc + k + 2)}")
        for k in (0, 4):
            A(f"v_mul_f32 {v(acc + k)}, -{v(acc + k)}, {v(acc + k + 2)}")
        A("s_waitcnt lgkmcnt(0)")
        A(f"s_add_u32 {s(sTAG)}, {s(sTAG)}, {TAG_STEP}\ns_and_b32 {s(sTAG)}, {s(sTAG)}, 0xfffffff0")
        A(f"s_getreg_b32 {s(sENT)}, hwreg(HW_REG_XCC_ID)\ns_and_b32 {s(sENT)}, {s(sENT)}, 15\ns_or_b32 {s(sENT)}, {s(sENT)}, {s(sTAG)}")
        A(f"v_mov_b32 {v(vTAG)}, {s(sTAG)}")
        for i in range(16):
            b = 64 + 8 * i
            nb, rs = acc + 4 * (i & 1), acc + 4 * (i & 1) + 2
            for d in range(4):
                A(f"v_pk_fma_f32 {v(b + 2 * d, 2)}, {v(b + 2 * d, 2)}, {v(rs, 2)}, {v(nb, 2)} op_sel_hi:[1,0,0]")
            for d in range(4):
                A(f"v_cvt_pk_bf16_f32 {v(b + d)}, {v(b + 2 * d)}, {v(b + 2 * d + 1)}")
            A(f"ds_write_b128 {v(200 + (i >> 1))}, {v(b, 4)} offset:{(i & 1) * 8 * XROW}")
            if side and i >= self.opt.get("w_norm", 12):
                if not callable(side[0]):
                    self.emit(side.pop(0))
                self.emit(side.pop(0))
        while len(side) % 5:
            self.emit(side.pop(0))
        self.s1_left = [side[k:k + 5] for k in range(0, len(side), 5)]
        self.stamp("ln1")

    def s1_reads(self, n):
        slot = n % 5
        wa, base = (vWA, slot * SLOT) if slot < 4 else (vWA + 1, slot * SLOT - 0x10000)
        wf = 64 + 32 * (n & 1)
        steps = []
        if n < 8:
            for ks in range(4):
                L = [f"ds_read_b128 {a_(16 * n + 4 * ks, 4)}, {v(vT + 9)} offset:{ks * 32}"]
                for part in range(2):
                    for j in range(2):
                        L.append(f"ds_read_b64_tr_b16 {v(wf + 8 * ks + 4 * part + 2 * j, 2)}, {v(wa)} offset:{base + part * 8192 + ks * 2048 + j * 512}")
                steps.append(L)
        else:
            for ks in range(8):
                steps.append([f"ds_read_b64_tr_b16 {v(wf + 4 * ks + 2 * j, 2)}, {v(wa)} offset:{base + ks * 2048 + j * 512}" for j in range(2)])
        return steps

    def s1_xaddr(self, n):
        A = self.A
        A(f"s_xor_b32 s74, s96, {n}\ns_lshl_b32 s74, s74, 7")
        A(f"v_add_u32 {v(vT + 9)}, s74, {v(vXA)}")

    def s1_mfmas(self, n):
        wf = 64 + 32 * (n & 1)
        aK, aV, aQ = 224, 240, 208
        out = []
        if n < 8:
            for ks in range(4):
                first = n == 0 and ks == 0
                xf = a_(16 * n + 4 * ks, 4)
                out.append(f"{MF32} {v(aK, 16)}, {v(wf + 8 * ks, 4)}, {xf}, {'0' if first else v(aK, 16)}")
                out.append(f"{MF32} {v(aV, 16)}, {xf}, {v(wf + 8 * ks + 4, 4)}, {'0' if first else v(aV, 16)}")
        else:
            for ks in range(8):
                first = n == 8 and ks == 0
                out.append(f"{MF32} {v(aQ, 16)}, {v(wf + 4 * ks, 4)}, {a_(32 * (n - 8) + 4 * ks, 4)}, {'0' if first else v(aQ, 16)}")
        return out

    def interleave(self, mf, fill, vm=(), front=0, extra=()):
        A = self.A
        k, vm, n = 0, list(vm), len(mf) - front
        nload = sum(1 for t in vm if callable(t))
        done = 0
        extra = list(extra)
        nex = len(extra)
        for i, m in enumerate(mf):
            A(m)
            upto = min(len(fill), (len(fill) * (i + 1) + n - 1) // n)
            while k < upto:
                self.emit(fill[k])
                k += 1
            while vm and (not callable(vm[0]) or done * len(mf) < nload * i + 1):
                done += callable(vm[0])
                self.emit(vm.pop(0))
            share = (i + 1) + 2 * max(0, i + 1 - n)
            while extra and (nex - len(extra)) * (len(mf) + 2 * front) < nex * share:
                self.emit(extra.pop(0))
        for it in vm + extra:
            self.emit(it)

    def qkv(self):
        A = self.A
        o = self.opt
        aK, aV, aQ = 224, 240, 208
        self.s1_xaddr(0)
        A.wait(self.dtok[0])
        A("s_waitcnt lgkmcnt(0)\ns_barrier")
        rt = {}
        for ks, st in enumerate(self.s1_reads(0)):
            for t in st:
                rt[(0, ks)] = A(t)
        late = list(self.late_setup)
        fill = [
            f"s_lshl1_add_u32 s63, {s(sHQ)}, {s(sHP)}", "s_lshl_b32 s70, s63, 15",
            f"s_lshl_b32 s71, {s(sT)}, 11", "s_add_u32 s70, s70, s71", f"s_add_u32 s70, s70, {WS_KV}", "s_add_u32 s71, s70, 0x4000",
            "s_lshl_b32 s69, s63, 10", f"s_add_u32 s69, s69, {WS_KVF - OWN}", f"s_lshl_b32 s63, {s(sT)}, 7", "s_add_u32 s72, s69, s63", f"s_add_u32 s72, s72, {OWN}",
            f"v_and_b32 {v(vT)}, 15, {v(vL)}", f"v_lshrrev_b32 {v(vT + 1)}, 5, {v(vL)}", f"v_lshlrev_b32 {v(vT)}, 4, {v(vT)}",
            f"v_lshl_add_u32 {v(vT + 10)}, {v(vT + 1)}, 8, {v(vT)}",
            f"v_and_b32 {v(vT)}, 16, {v(vL)}", f"v_lshl_add_u32 {v(vT + 2)}, {v(vT)}, 10, {v(vT + 10)}",
            f"v_lshl_add_u32 {v(vT + 3)}, {v(vT)}, 8, {v(vT + 10)}",
            f"s_lshl_b32 s63, {s(sHP)}, 13", f"s_lshl_b32 s73, {s(sTT)}, 11", "s_add_u32 s63, s63, s73", f"s_add_u32 s63, s63, {XKV}",
            f"v_add_u32 {v(vT + 3)}, s63, {v(vT + 3)}", f"v_add_u32 {v(vT + 4)}, s63, {v(vO16)}",
            f"v_mov_b32 v144, {s(sENT)}", f"v_and_b32 v145, 31, {v(vL)}", "v_lshlrev_b32 v145, 2, v145",
            f"s_lshl_b32 s21, {s(sW)}, 15", "s_add_u32 s21, s21, s94",
        ]
        if self.priv:
            fill += [
                f"s_lshl_b32 s80, {s(sHP)}, 11", "s_lshl_b32 s81, s94, 5", "s_add_u32 s80, s80, s81",
                f"s_lshl_b32 s81, {s(sB)}, 16", "s_add_u32 s81, s81, s80", f"s_lshl_b32 s82, {s(sTT)}, 15", "s_add_u32 s82, s82, s81",
                f"s_add_u32 s82, s82, {WS_O + 4 * 65536}", f"s_lshl_b32 s83, {s(sTT)}, 10", "s_add_u32 s83, s83, s81", f"s_add_u32 s83, s83, {WS_H + 4 * 65536}",
                f"s_cmp_ge_u32 {s(sB)}, 28\ns_cselect_b32 s81, 0x40000000, 0",
                f"v_add_u32 v148, s81, {v(vO16)}", f"v_lshl_add_u32 v149, {v(vT)}, 11, {v(vT + 10)}", "v_add_u32 v149, s81, v149",
            ]
        late += fill + self.prefill
        self.s1_xaddr(1)
        A.wait(rt[(0, 0)])
        for n in range(8):
            mf = self.s1_mfmas(n)
            order = list(range(8)) if n < 7 else [0, 2, 4, 6, 1, 3, 5, 7]
            reads = [(ks, t) for ks, st in enumerate(self.s1_reads(n + 1)) for t in st] if n < 7 else []
            if n == 0:
                self.streams = {"dma": sum((self.grp_units(gr, 0, 0) for gr in self.s1_left), [])}
            else:
                self.streams["dma"] += self.grp_units(self.s1_dma(n + 4), 0, 0)
            for g in range(8):
                A(mf[order[g]])
                mark = len(A.lines)
                nxt = (n, order[g + 1] >> 1) if g < 7 else (n + 1, 0)
                A.wait(rt.get(nxt), self.dtok[n + 1] if g == 0 and n < 7 else None)
                if g == 0:
                    A("s_barrier")
                for _ in range((2, 3, 3, 2, 3, 2, 3, 2)[g]):
                    if reads:
                        ks, t = reads.pop(0)
                        rt[(n + 1, ks)] = A(t)
                if g == 7 and n < 6:
                    self.s1_xaddr(n + 2)
                go = g & 1 or len(self.streams["dma"]) > (8 - g) // 2
                self.credit = 1.0 if go else 0.0
                self.vm_slot(-100, 0, None if go else mark, early_ok=True)
                self.side(late, mark, o.get("kv_budget", 24))
            self.stamp(f"c{n}", "s1")
        assert len(late) <= len(self.prefill) and not self.streams["dma"]
        rest = late
        pk = 128
        for k in range(8):
            A(f"v_cvt_pk_bf16_f32 {v(pk + k)}, {v(aK + 2 * k)}, {v(aK + 2 * k + 1)}")
        A(f"buffer_store_dwordx4 {v(pk, 4)}, {v(vO16)}, {WS}, s70 offen sc1")
        A(f"buffer_store_dwordx4 {v(pk + 4, 4)}, {v(vO16)}, {WS}, s71 offen sc1")
        if self.priv:
            A(f"buffer_store_dwordx4 {v(pk, 4)}, v148, {WS}, s82 offen sc1")
            A(f"buffer_store_dwordx4 {v(pk + 4, 4)}, v148, {WS}, s82 offen offset:1024 sc1")
        for k in range(8):
            A(f"v_cvt_pk_bf16_f32 {v(pk + 8 + k)}, {v(aV + 2 * k)}, {v(aV + 2 * k + 1)}")
        A(f"buffer_store_dwordx4 {v(pk + 8, 4)}, {v(vT + 2)}, {WS}, s70 offen offset:1024 sc1")
        kvtok = A(f"buffer_store_dwordx4 {v(pk + 12, 4)}, {v(vT + 2)}, {WS}, s70 offen offset:1536 sc1")
        if self.priv:
            A(f"buffer_store_dwordx4 {v(pk + 8, 4)}, v149, {WS}, s83 offen sc1")
            kvtok = A(f"buffer_store_dwordx4 {v(pk + 12, 4)}, v149, {WS}, s83 offen offset:512 sc1")
        self.stamp("kvst")
        if o.get("warm_q", 0):
            self.warm_items()[0]()
        A.wait(self.dtok[11])
        A("s_barrier")
        reads = sum((self.s1_reads(n) for n in range(8, 12)), [])
        mf = sum((self.s1_mfmas(n) for n in range(8, 12)), [])
        rt, lead = {}, 6
        for k in range(lead):
            for t in reads[k]:
                rt[k] = A(t)
        late = [f"ds_write_b128 {v(vT + 4)}, {v(pk, 4)}", f"ds_write_b128 {v(vT + 4)}, {v(pk + 4, 4)} offset:4096",
                f"ds_write_b128 {v(vT + 3)}, {v(pk + 8, 4)} offset:1024", f"ds_write_b128 {v(vT + 3)}, {v(pk + 12, 4)} offset:1536"]
        late += self.attn_setup() + rest
        wo = sum((self.grp_units(self.wo_dma(i), 0, 0) for i in range(4)), []) if o.get("wo_early", 1) else []
        self.streams = {"dma": wo}
        A.wait(rt[0])
        for k in range(32):
            A(mf[k])
            mark = len(A.lines)
            fl = k == o.get("kvflag_k", 14)
            A.wait(rt.get(k + 1), kvtok if fl else None)
            if fl:
                A(f"buffer_store_dword v144, v145, {WS}, s72 offen sc1")
                self.stamp("kvflag")
            if k + lead < 32:
                for t in reads[k + lead]:
                    rt[k + lead] = A(t)
            go = len(wo) * 2 > o.get("wo_end", 32) - k
            self.credit = 1.0 if go else 0.0
            self.vm_slot(-100, 0, None if go else mark, early_ok=True)
            if k == o.get("kvpoll_k", 32):
                assert not wo and not any(isinstance(t, str) and "v%d," % (vT + 11) in t for t in late)
                self.kvp = self.poll_issue(vT + 11, vT + 8)
            self.side(late, mark, o.get("q_budget", 24))
        assert not wo
        self.qlate = late
        if o.get("kvpoll_k", 32) >= 32:
            self.kvp = self.poll_issue(vT + 11, vT + 8)
        if o.get("verbose"):
            print("left after Q stream:", len(late))
        for t in late:
            self.emit(t)
        lz = self.lab("kz")
        A(f"s_cmp_lg_u32 {s(sG)}, 0\ns_cbranch_scc1 {lz}")
        A(f"v_mov_b32 v147, {CONST + 16}")
        for j in range(8):
            A.raw(f"ds_read_b128 {a_(128 + 12 * j, 4)}, v147")
        A.raw("s_waitcnt lgkmcnt(0)")
        if self.priv:
            for n, at in enumerate(("s86 offen", "s87 offen", "s64 offen", "s64 offen offset:1024")):
                A.raw(f"buffer_load_dwordx4 {v(76 + 4 * n, 4)}, {v(vO16)}, {WS}, {at} sc1")
        A.label(lz)
        self.ktok = {}
        if o.get("kv_first", 0) == 1:
            A("s_waitcnt lgkmcnt(0)")
            self.kv_check()
        A(f"s_mov_b32 s63, 0x3eb8aa3b\ns_lshl_b32 s73, {s(sHP)}, 12\ns_lshl_b32 s74, {s(sTT)}, 10\ns_add_u32 s73, s73, s74\ns_add_u32 s73, s73, {XQ}")
        A(f"v_add_u32 {v(vT)}, s73, {v(vO16)}")
        A(f"s_add_u32 s73, {s(sW4K)}, {XKV}\nv_add_u32 {v(vT + 9)}, s73, {v(vO16)}\nv_add_u32 {v(vT + 4)}, s73, {v(vT + 10)}")
        A(f"s_lshl_b32 s73, {s(sW)}, 11\ns_add_u32 s73, s73, {XQ}\nv_add_u32 {v(vT + 5)}, s73, {v(vO16)}")
        for hh in range(2):
            for k in range(8):
                A(f"v_mul_f32 {v(aQ + 8 * hh + k)}, s63, {v(aQ + 8 * hh + k)}")
            for k in range(4):
                A(f"v_cvt_pk_bf16_f32 {v(pk + 4 * hh + k)}, {v(aQ + 8 * hh + 2 * k)}, {v(aQ + 8 * hh + 2 * k + 1)}")
            A(f"ds_write_b128 {v(vT)}, {v(pk + 4 * hh, 4)} offset:{2048 * hh}")
        if o.get("kv_first", 0) == 2:
            A("s_waitcnt lgkmcnt(0)")
            self.kv_check()
        A("s_waitcnt lgkmcnt(0)\ns_barrier")
        A(f"ds_read_b128 {a_(248, 4)}, {v(vT + 5)}\nds_read_b128 {a_(252, 4)}, {v(vT + 5)} offset:1024")
        for t in range(2):
            A(f"ds_read_b128 {a_(128 + 12 * (8 + t), 4)}, {v(vT + 9)} offset:{t * 2048}")
        A("s_mov_b32 exec_lo, 0xffff\ns_mov_b32 exec_hi, 0xffff")
        for t in range(2):
            for k in range(2):
                A(f"ds_read_b128 {a_(128 + 12 * (8 + t) + 4 + 4 * k, 4)}, {v(vT + 4)} offset:{t * 2048 + 1024 + k * 512}")
        A("s_mov_b64 exec, -1")
        self.stamp("q")

    def kv_block(self, blk):
        A, ktok = self.A, self.ktok
        ls = self.lab("kvs")
        A(f"s_cmp_ge_u32 {s(sTB)}, {4 - blk}\ns_cselect_b32 s71, {OWN - 16384}, 0\ns_add_u32 s71, s71, s70")
        A(f"s_add_u32 s71, s71, {blk * 4096}\ns_cmp_lt_u32 {s(sB)}, {4 - blk}\ns_cbranch_scc1 {ls}")
        pv = self.priv and blk == 0
        for t in range(2):
            at = f"s{86 + t} offen" if pv else f"s71 offen offset:{t * 2048}"
            A(f"buffer_load_dwordx4 {a_(128 + 12 * (2 * blk + t), 4)}, {v(vO16)}, {WS}, {at} sc1")
        A("s_mov_b32 exec_lo, 0xffff\ns_mov_b32 exec_hi, 0xffff")
        for t in range(2):
            for k in range(2):
                at = f"s64 offen offset:{t * 1024 + k * 512}" if pv else f"s71 offen offset:{t * 2048 + 1024 + k * 512}"
                ktok[blk] = A(f"buffer_load_dwordx4 {a_(128 + 12 * (2 * blk + t) + 4 + 4 * k, 4)}, {v(vT + 10)}, {WS}, {at} sc1")
        A("s_mov_b64 exec, -1")
        A.label(ls)

    def kv_check(self):
        A = self.A
        ls, lb = self.lab("spin"), self.lab("back")
        A.wait(self.kvp)
        A(f"v_xor_b32 v73, {v(vT + 8)}, {v(vTAG)}\nv_cmp_lt_u32 vcc, 15, v73\ns_cbranch_vccnz {ls}")
        A.label(lb)
        self.tail.append((ls, lb, vT + 11, 72))
        self.kv_block(0)
        self.kv_block(1)
        self.stamp("kvpoll")

    def attn_setup(self):
        mD, mF = 176, 192
        real, self.A = self.A, Asm()
        A = self.A
        A(f"v_and_b32 {v(vT)}, 31, {v(vL)}\nv_lshrrev_b32 {v(vT + 1)}, 5, {v(vL)}\nv_lshlrev_b32 v146, 2, {v(vT + 1)}")
        A(f"v_sub_u32 v146, {v(vT)}, v146")
        A(f"v_lshlrev_b32 {v(vT + 2)}, 10, {v(vT)}\nv_lshl_add_u32 {v(vT + 12)}, {v(vT + 1)}, 3, {v(vT + 2)}")
        A(f"s_lshl1_add_u32 s20, {s(sB)}, {s(sTT)}\ns_lshl_b32 s20, s20, 15\ns_add_u32 s20, s20, s94\ns_lshl_b32 s63, {s(sHP)}, 6\ns_add_u32 s20, s20, s63")
        A(f"v_lshrrev_b32 {v(vT + 1)}, 2, {v(vT)}\nv_and_b32 {v(vT)}, 3, {v(vT)}\nv_lshlrev_b32 {v(vT)}, 8, {v(vT)}")
        A(f"v_lshl_add_u32 {v(vT)}, {v(vT + 1)}, 11, {v(vT)}\nv_add_u32 {v(vT + 13)}, {WS_KVF}, {v(vT)}")
        A(f"s_lshl_b32 s73, {s(sTB)}, 1\nv_min_u32 {v(vT)}, 7, {v(vL)}\nv_add_u32 {v(vT)}, s73, {v(vT)}")
        A(f"s_sub_u32 s73, {s(sG)}, 1\ns_lshr_b32 s73, s73, 28\ns_and_b32 s73, s73, 8\nv_max_u32 {v(vT)}, s73, {v(vT)}")
        A(f"v_lshrrev_b32 {v(vT + 1)}, 3, {v(vT)}\nv_and_b32 {v(vT)}, 7, {v(vT)}\nv_lshl_add_u32 {v(vT)}, {v(vT)}, 7, s69\nv_lshl_add_u32 {v(vT + 11)}, {v(vT + 1)}, 21, {v(vT)}")
        A(f"s_lshl2_add_u32 s63, {s(sHQ)}, {s(sW)}\ns_lshl_b32 s70, s63, 14\ns_lshl_b32 s71, {s(sTB)}, 12\ns_add_u32 s70, s70, s71")
        A(f"s_mul_i32 s22, {s(sTT)}, {32 * 3584}\ns_lshl_b32 s63, {s(sC)}, 7\ns_add_u32 s22, s22, s63")
        A(f"s_lshl2_add_u32 s63, {s(sHQ)}, {s(sW)}\ns_lshl_b32 s86, s63, 10\ns_lshl_b32 s87, {s(sTB)}, 16\ns_add_u32 s86, s86, s87")
        A(f"s_add_u32 s86, s86, {WS_O}\ns_add_u32 s87, s86, 32768")
        A(f"s_lshl_b32 s89, {s(sTB)}, 5\ns_add_u32 s89, s89, s63\ns_lshl_b32 s89, s89, 2\ns_add_u32 s89, s89, {WS_OF}")
        A(f"s_lshl_b32 s84, {s(sT)}, 15\ns_lshl_b32 s63, s94, 5\ns_add_u32 s84, s84, s63\ns_lshl_b32 s63, {s(sHP)}, 11\ns_add_u32 s84, s84, s63\ns_add_u32 s64, s84, {WS_H}")
        if self.opt.get("rot_gu", 1):
            A(f"s_lshr_b32 s99, {s(sC)}, 1\ns_and_b32 s99, s99, 7\ns_xor_b32 s99, s99, {s(sG)}")
        else:
            A(f"s_mov_b32 s99, {s(sG)}")
        rd = self.opt.get("rot_dn", 0)
        if rd == 1:
            A(f"s_min_u32 s100, {s(sHQ)}, 6")
        elif rd == 2:
            A(f"s_and_b32 s100, {s(sTB)}, 1\ns_mul_i32 s100, s100, 3\ns_add_u32 s100, s100, {s(sHQ)}\ns_sub_u32 s63, s100, 7\ns_min_u32 s100, s100, s63")
        else:
            A("s_mov_b32 s100, 0")
        self.pt = self.pretouch()
        A(f"s_mul_i32 s63, {s(sHP)}, {32768 - 8192}\ns_add_u32 s63, s63, {5 * SLOT}")
        A(f"v_add_u32 {v(vT + 2)}, s63, {v(vDN)}\nv_add_u32 {v(vT + 3)}, s63, {v(vDN + 1)}")
        A(f"v_mov_b32 {v(vT + 7)}, 0x207")
        A(f"v_sub_u32 v151, 31, {v(vL)}\nv_ashrrev_i32 v151, 31, v151\nv_and_b32 v151, {NEG}, v151\nv_xor_b32 v152, {NEG}, v151")
        A(f"s_mov_b32 s63, {MTAB}\nv_lshl_add_u32 v153, {v(vL)}, 2, s63\nds_write2_b32 v153, v151, v152 offset0:0 offset1:64")
        A(f"v_sub_u32 v146, 31, v146\nv_lshl_add_u32 v146, v146, 2, s63\n@wait")
        for m, base in ((mD, 0), (mF, 64)):
            for r in range(0, 16, 2):
                kr = 8 * (r >> 2) + (r & 3)
                A(f"ds_read2_b32 {v(m + r, 2)}, v146 offset0:{base + kr} offset1:{base + kr + 1}")
        self.A = real
        st, out = {}, []
        for t in A.lines:
            if t.startswith("ds_write2"):
                out.append(lambda t=t: st.__setitem__(0, real(t)))
            elif t == "@wait":
                out.append(lambda: real.wait(st[0]))
            else:
                out.append(t)
        return out

    def attention(self):
        A = self.A
        o = self.opt
        mD, mF, S0, P, O0 = 176, 192, 96, 128, 144
        A("s_waitcnt lgkmcnt(0)")

        tiles = [(0, 8, "d"), (1, 8, ""), (1, 9, "d"), (0, 0, "f"), (0, 1, ""), (1, 1, "f")]
        for j in range(2, 8):
            tiles += [(0, j, ""), (1, j, "")]
        started = [False, False]

        def s_mfma(n):
            q, j, m = tiles[n]
            c = {"": "0", "d": v(mD, 16), "f": v(mF, 16)}[m]
            return f"{MF32} {v(S0 + 16 * (n & 1), 16)}, {a_(128 + 12 * j, 4)}, {a_(248 + 4 * q, 4)}, {c}"

        def body(n, fill, head=None):
            q, j, m = tiles[n]
            S = S0 + 16 * (n & 1)
            O = O0 + 16 * q
            fill = list(fill)
            per = (len(fill) + 6) // 7
            for hh in range(2):
                for k in range(4):
                    r = 8 * hh + 2 * k
                    A(f"v_exp_f32 {v(S + r)}, {v(S + r)}\nv_exp_f32 {v(S + r + 1)}, {v(S + r + 1)}")
                    if k > 0:
                        A(f"v_cvt_pk_bf16_f32 {v(P + 4 * hh + k - 1)}, {v(S + r - 2)}, {v(S + r - 1)}")
                    if hh == 0 and k == 1 and head:
                        A(head)
                    if hh == 1 and k == 0:
                        A(f"v_cvt_pk_bf16_f32 {v(P + 3)}, {v(S + 6)}, {v(S + 7)}")
                    if hh == 1 and k == 2:
                        A(f"{MF32} {v(O, 16)}, {a_(128 + 12 * j + 4, 4)}, {v(P, 4)}, {v(O, 16) if started[q] else '0'}")
                        started[q] = True
                    for _ in range(per if hh or k else 0):
                        if fill:
                            self.emit(fill.pop(0))
            A(f"v_cvt_pk_bf16_f32 {v(P + 7)}, {v(S + 14)}, {v(S + 15)}")
            return f"{MF32} {v(O, 16)}, {a_(128 + 12 * j + 8, 4)}, {v(P + 4, 4)}, {v(O, 16)}"

        ktok, kv_block = self.ktok, self.kv_block
        woreads = [f"ds_read_b64_tr_b16 {a_(8 * i + 4 * ct + 2 * j, 2)}, {v(vT + 2 + ct)} offset:{i * 2048 + j * 1024}"
                   for i in range(16) for ct in range(2) for j in range(2)]
        self.gtok = {}
        nb = self.opt.get("local_before", 1)
        A(s_mfma(0))
        head = None
        for n in range(3):
            if n == nb:
                break
            if n < 2:
                A(s_mfma(n + 1))
            head = body(n, [], head)
        if head:
            A(head)
            head = None
        self.stamp("local")
        if not o.get("kv_first", 0):
            self.kv_check()
        early = o.get("wo_early", 1) and o.get("wo_read_early", 0)
        if early:
            A("s_barrier")
            if nb == 3:
                for t in woreads:
                    A(t)
        for n in range(nb, 3):
            if n < 2:
                A(s_mfma(n + 1))
            k0, k1 = 64 * (n - nb) // (3 - nb), 64 * (n + 1 - nb) // (3 - nb)
            fl = woreads[k0:k1] if early else []
            if n == o.get("b2_tile", 9):
                fl = fl + [lambda: kv_block(2)]
            if n == o.get("b3_tile", 3):
                fl = fl + [lambda: kv_block(3)]
            head = body(n, fl, head)
        if 2 not in ktok:
            kv_block(2)
        A("s_waitcnt lgkmcnt(0)\ns_barrier")
        fills = {n: [] for n in range(3, 18)}
        if 3 not in ktok:
            fills[o.get("b3_tile", 3)] = [lambda: kv_block(3)]
        xr = [f"buffer_load_dwordx2 {v(64 + 2 * j, 2)}, {v(vT + 12)}, {X}, s20 offen offset:{j * 16}" for j in range(4)]
        chk = {}
        if self.wr:
            wt = {}
            for n, at in enumerate(("s86 offen", "s87 offen", "s64 offen", "s64 offen offset:1024")):
                fills[o.get("wr_tile", 4) + n // 2].append(lambda at=at: wt.__setitem__(0, A(f"buffer_store_dwordx4 {v(mD, 4)}, {v(vO16)}, {WS}, {at} sc1")))
            fills[o.get("rd_tile", 11)] += [lambda: A.wait(wt[0])] + self.pt
            self.pt = []
        fills[o.get("pt_tile", 5)] += xr + self.pt + [lambda: chk.__setitem__(0, self.poll_issue(vT + 13, 72))]
        groups = [] if o.get("wo_early", 1) else [self.wo_dma(i) for i in range(4)]
        self.guq = sum(([u + [("g", j)] for u in self.grp_units(self.gu_dma(j), 0, -1)] for j in range(8)), [])
        d0, d1 = o.get("d0", 6), o.get("d1", 12)
        units = sum((self.grp_units(g, 0, 0) for g in groups), []) + [self.guq.pop(0) for _ in range(o.get("uD", 4))]
        for n, u in enumerate(units):
            fills[d0 + n * (d1 - d0) // len(units)] += u[2]
        if o.get("spare_warm", 2) == 1:
            fills[d0].insert(0, self.spare_warm)
        self.woreads = [] if early else woreads
        A.wait(ktok[0])
        self.stamp("kv0")
        A(s_mfma(3))
        for n in range(3, 18):
            if n + 1 < 18:
                A.wait(ktok.get(tiles[n + 1][1] >> 1))
                A(s_mfma(n + 1))
            head = body(n, fills[n], head)
        A(head)
        self.stamp("attn")
        A("s_mov_b32 s90, 0")
        A.label("L_onorm")
        for q in range(2):
            O = O0 + 16 * q
            A(f"v_rcp_f32 {v(O + 9)}, {v(O + 8)}")
            for k in range(8):
                A(f"v_mul_f32 {v(O + k)}, {v(O + k)}, {v(O + 9)}")
            for k in range(4):
                A(f"v_cvt_pk_bf16_f32 {v(P + 8 + 4 * q + k)}, {v(O + 2 * k)}, {v(O + 2 * k + 1)}")
            self.otok = A(f"buffer_store_dwordx4 {v(P + 8 + 4 * q, 4)}, {v(vO16)}, {WS}, s{86 + q} offen{self.ohs}")
        for k in range(1, 8):
            src = O0 + 2 * k if k < 4 else O0 + 16 + 2 * (k - 4)
            A(f"v_pk_add_f32 {v(O0, 2)}, {v(O0, 2)}, {v(src, 2)}")
        A(f"v_add_f32 {v(O0)}, {v(O0)}, {v(O0 + 1)}\ns_mov_b32 s63, 0x2b800000\ns_mov_b32 s73, {0x7b800000 if not self.force_fb else 0x2b800000}")
        A(f"v_cmp_class_f32 vcc, {v(O0)}, {v(vT + 7)}")
        for q in range(2):
            A(f"v_cmp_nle_f32 s[74:75], s63, {v(O0 + 16 * q + 8)}\ns_or_b64 vcc, vcc, s[74:75]")
            A(f"v_cmp_nge_f32 s[74:75], s73, {v(O0 + 16 * q + 8)}\ns_or_b64 vcc, vcc, s[74:75]")
        A("s_cmp_lg_u32 s90, 0\ns_cbranch_scc1 L_ook\ns_cmp_lg_u64 vcc, 0\ns_cbranch_scc1 L_truemax")
        A.label("L_ook")
        ls, lb = self.lab("spin"), self.lab("back")
        A.wait(chk[0])
        A(f"v_xor_b32 v73, v72, {v(vTAG)}\nv_cmp_lt_u32 vcc, 15, v73\ns_cbranch_vccnz {ls}")
        A.label(lb)
        self.tail.append((ls, lb, vT + 13, 72))
        A(f"v_cmp_ne_u32 vcc, {s(sENT)}, v72\ns_cmp_eq_u64 vcc, 0\ns_cselect_b32 {s(sFAST)}, {0 if self.force_slow else 1}, 0")

    def truemax(self):
        A = self.A
        mD, mF, S, P, O0 = 176, 192, 96, 128, 144
        K, V, M = 208, 212, 220
        A.label("L_truemax")
        A("s_waitcnt vmcnt(0)\ns_mov_b32 s90, 1")
        for k in range(8):
            A(f"v_mov_b32 {v(V + k)}, {ONES}")

        def scores(q, lab):
            A(f"s_cmp_eq_u32 s73, 0\ns_cbranch_scc1 {lab}f\ns_cmp_eq_u32 s73, 8\ns_cbranch_scc1 {lab}d")
            for tag, c in (("", "0"), ("f", v(mF, 16)), ("d", v(mD, 16))):
                if tag:
                    A.label(lab + tag)
                A(f"{MF32} {v(S, 16)}, {v(K, 4)}, {a_(248 + 4 * q, 4)}, {c}")
                if tag != "d":
                    A(f"s_branch {lab}x")
            A.label(lab + "x")
            A("s_nop 15")

        for q in range(2):
            O = O0 + 16 * q
            for ps in range(2):
                lab = f"L_tm{q}{ps}"
                if ps == 0:
                    A(f"v_mov_b32 {v(M)}, {NEG}")
                else:
                    for r in range(16):
                        A(f"v_mov_b32 {v(O + r)}, 0")
                A(f"s_lshl_b32 s73, {s(sB)}, 1\ns_sub_i32 s73, {8 - q}, s73\ns_max_i32 s73, s73, 0")
                A.label(lab)
                A(f"s_add_u32 s71, s73, {q}\ns_lshl1_add_u32 s63, {s(sTB)}, s71\ns_lshl_b32 s71, s71, 11\ns_add_u32 s71, s71, s70")
                A(f"s_cmp_ge_u32 s63, 8\ns_cselect_b32 s63, {OWN - 16384}, 0\ns_add_u32 s71, s71, s63")
                A(f"buffer_load_dwordx4 {v(K, 4)}, {v(vO16)}, {WS}, s71 offen sc1")
                if ps:
                    A("s_mov_b32 exec_lo, 0xffff\ns_mov_b32 exec_hi, 0xffff")
                    for k in range(2):
                        A(f"buffer_load_dwordx4 {v(V + 4 * k, 4)}, {v(vT + 10)}, {WS}, s71 offen offset:{1024 + k * 512} sc1")
                    A("s_mov_b64 exec, -1")
                A("s_waitcnt vmcnt(0)")
                scores(q, lab)
                if ps == 0:
                    for r in range(0, 16, 2):
                        A(f"v_max3_f32 {v(M)}, {v(S + r)}, {v(S + r + 1)}, {v(M)}")
                else:
                    for r in range(16):
                        A(f"v_sub_f32 {v(S + r)}, {v(S + r)}, {v(M)}")
                    for r in range(16):
                        A(f"v_exp_f32 {v(S + r)}, {v(S + r)}")
                    for k in range(8):
                        A(f"v_cvt_pk_bf16_f32 {v(P + k)}, {v(S + 2 * k)}, {v(S + 2 * k + 1)}")
                    for k in range(2):
                        A(f"{MF32} {v(O, 16)}, {v(V + 4 * k, 4)}, {v(P + 4 * k, 4)}, {v(O, 16)}")
                    A("s_nop 15")
                A(f"s_add_u32 s73, s73, 1\ns_cmp_le_u32 s73, 8\ns_cbranch_scc1 {lab}")
                if ps == 0:
                    A(f"v_mov_b32 {v(M + 1)}, {v(M)}\nv_permlane32_swap_b32 {v(M)}, {v(M + 1)}\nv_max_f32 {v(M)}, {v(M)}, {v(M + 1)}")
        A("s_branch L_onorm")

    def gu_dma(self, j):
        su = f"s_xor_b32 s91, s99, {0 if self.opt.get('x_gu') else j}\ns_mul_i32 s91, s91, {64 * 3584}\ns_add_u32 s91, s91, s22"
        return self.grp2(j, su, 91, vD3584, WGU, self.gtok, j)

    def warm_items(self):
        A = self.A

        def go():
            A(f"s_mul_i32 s61, s95, {14 * 128}\nv_lshl_add_u32 v146, {v(vL)}, 7, s61\ns_mov_b64 exec, 0x3fff")
            A(f"global_load_dword {v(vJ)}, v146, s[52:53]\nglobal_load_dword {v(vJ)}, v146, s[54:55]")
            if self.opt.get("warm_q", 0) == 2:
                A(f"global_load_dword {v(vJ)}, v146, s[56:57]")
            A("s_mov_b64 exec, -1")
        return [go]

    def spare_warm(self):
        A = self.A
        ls = self.lab("sw")
        A(f"s_cmp_lt_u32 {s(sC)}, 28\ns_cbranch_scc1 {ls}")
        A(f"s_sub_u32 s63, s95, {224 * 4}\ns_mul_i32 s63, s63, {112 * 128}\nv_lshlrev_b32 {v(vT)}, 7, {v(vL)}\nv_min_u32 {v(vT + 1)}, {47 * 128}, {v(vT)}")
        A.raw(f"buffer_load_dword {v(vJ)}, {v(vT)}, {WD}, s63 offen")
        A("s_add_u32 s63, s63, 8192")
        A.raw(f"buffer_load_dword {v(vJ)}, {v(vT + 1)}, {WD}, s63 offen")
        A.label(ls)

    def gu_more(self, n):
        out = []
        for _ in range(n):
            if self.guq:
                out += self.guq.pop(0)[2]
        return out

    def rot7(self, reg, j, shift, base):
        if self.opt.get("x_hh") and shift == 13:
            return f"s_xor_b32 s{reg}, s97, {j << 12}"
        if not self.opt.get("rot_dn", 0):
            return f"s_add_u32 s{reg}, s{base}, {j << shift}"
        t = {70: 101, 71: 75, 62: 74}[reg]
        return (f"s_add_u32 s{reg}, s100, {j}\ns_sub_u32 s{t}, s{reg}, 7\ns_min_u32 s{reg}, s{reg}, s{t}\n"
                f"s_lshl_b32 s{reg}, s{reg}, {shift}\ns_add_u32 s{reg}, s{reg}, s{base}")

    def dn_dma(self, st):
        base = self.rot7(62, st % 7, 17, 23 if st < 7 else 80) if not self.opt.get("x_dn") else "s_mov_b32 s62, s23"
        return self.grp2((8 + st) % 9, base, 62, vD1024, WD, self.dntok, st)

    def pretouch(self):
        A = self.A
        A(f"s_and_b32 {s(sPAR)}, {s(sC)}, 1\ns_lshl2_add_u32 {s(sTA)}, {s(sPAR)}, {s(sW)}\ns_xor_b32 {s(sTBB)}, {s(sTA)}, 4")
        A(f"s_lshr_b32 {s(sE)}, {s(sTB)}, 1")
        if not self.opt.get("pretouch", 1):
            return []
        t0, t1, t2, t3 = vT, vT + 1, vT + 6, vT + 3
        if self.ohs or self.priv:
            A(f"v_and_b32 {v(t0)}, 1, {v(vL)}\nv_bfe_u32 {v(t1)}, {v(vL)}, 1, 1\nv_lshlrev_b32 {v(t0)}, 7, {v(t0)}\nv_lshl_add_u32 {v(t0)}, {v(t1)}, 11, {v(t0)}")
            A(f"s_lshl_b32 s63, {s(sT)}, 12\ns_lshl1_add_u32 s63, s94, s63\ns_add_u32 s63, s63, {WS_ST}\nv_add_u32 {v(t2)}, s63, {v(t0)}")
        else:
            A(f"v_and_b32 {v(t0)}, 7, {v(vL)}\nv_lshlrev_b32 {v(t0)}, 7, {v(t0)}\nv_bfe_u32 {v(t1)}, {v(vL)}, 3, 1")
            A(f"s_lshl_b32 s63, {s(sHQ)}, 2\ns_add_u32 s63, s63, {s(sW)}\ns_lshl_b32 s63, s63, 10\ns_lshl_b32 s73, {s(sTB)}, 16\ns_add_u32 s63, s63, s73\ns_add_u32 s63, s63, {WS_O}")
            A(f"v_lshl_add_u32 {v(t2)}, {v(t1)}, 15, {v(t0)}\nv_add_u32 {v(t2)}, s63, {v(t2)}")
            A(f"s_lshl_b32 s63, {s(sT)}, 15\ns_lshl_b32 s73, {s(sHQ)}, 12\ns_add_u32 s63, s63, s73\ns_lshl_b32 s73, {s(sHP)}, 11\ns_add_u32 s63, s63, s73\ns_add_u32 s63, s63, {WS_H}")
            A(f"v_lshl_add_u32 {v(t3)}, {v(t1)}, 10, {v(t0)}\nv_add_u32 {v(t3)}, s63, {v(t3)}")
            A(f"v_cmp_gt_u32 vcc, 16, {v(vL)}\nv_cndmask_b32 {v(t2)}, {v(t3)}, {v(t2)}, vcc")
            A(f"s_lshl_b32 s63, {s(sT)}, 12\ns_lshl1_add_u32 s63, s94, s63\ns_add_u32 s63, s63, {WS_ST}")
            A(f"v_and_b32 {v(t0)}, 0x80, {v(t0)}\nv_lshl_add_u32 {v(t0)}, {v(t1)}, 11, {v(t0)}\nv_add_u32 {v(t3)}, s63, {v(t0)}")
            A(f"v_cmp_gt_u32 vcc, 32, {v(vL)}\nv_cndmask_b32 {v(t2)}, {v(t3)}, {v(t2)}, vcc")
        for lane, expr in ((50, f"s_lshl_b32 s63, {s(sTB)}, 7\ns_add_u32 s63, s63, {WS_OF}"),
                           (51, f"s_lshl_b32 s63, {s(sT)}, 7\ns_add_u32 s63, s63, {WS_HF}"),
                           (52, f"s_lshl_b32 s63, {s(sT)}, 7\ns_add_u32 s63, s63, {WS_HHF}")):
            A(expr)
            A(f"v_writelane_b32 {v(t2)}, s63, {lane}")
        return [f"buffer_load_dword {v(vJ)}, {v(t2)}, {WS}, 0 offen sc1"]

    def pretouch_hh(self):
        A = self.A
        if not self.opt.get("pretouch_hh", 0):
            return []
        t0, t1 = vT + 6, vT + 1
        A(f"s_mul_i32 s63, {s(sTA)}, 114688\ns_mul_i32 s73, {s(sTBB)}, 114688\nv_mov_b32 {v(t0)}, s63\nv_mov_b32 {v(t1)}, s73")
        A(f"v_cmp_gt_u32 vcc, 32, {v(vL)}\nv_cndmask_b32 {v(t0)}, {v(t1)}, {v(t0)}, vcc")
        A(f"v_and_b32 {v(t1)}, 31, {v(vL)}\nv_lshl_add_u32 {v(t0)}, {v(t1)}, 7, {v(t0)}")
        A(f"s_min_u32 s63, {s(sC)}, 27\ns_lshl_b32 s63, s63, 12\ns_add_u32 s63, s63, {WS_HH}\nv_add_u32 {v(t0)}, s63, {v(t0)}")
        return [lambda: A(f"buffer_load_dword {v(vJ)}, {v(t0)}, {WS}, 0 offen sc1")]

    def wo(self):
        A = self.A
        aK, aS, rc = 64, 80, 96
        for it in self.gu_more(self.opt.get("uE1", 0)):
            self.emit(it)
        A(f"s_lshl_b32 s63, {s(sTB)}, 7\ns_lshl_b32 s73, {s(sHP)}, 6\ns_add_u32 s63, s63, s73\ns_add_u32 s63, s63, {WS_OF}")
        A(f"v_and_b32 {v(vT + 4)}, 15, {v(vL)}\nv_lshlrev_b32 {v(vT + 4)}, 2, {v(vT + 4)}\nv_add_u32 {v(vT + 11)}, s63, {v(vT + 4)}")
        A(f"s_lshl_b32 s70, {s(sT)}, 15\ns_lshl_b32 s63, {s(sHP)}, 14\ns_add_u32 s70, s70, s63\ns_add_u32 s70, s70, {WS_O}")
        if not self.opt.get("wo_early", 1):
            A.wait(self.dtok["wo"])
            A("s_barrier")
        for t in self.woreads:
            A(t)
        self.dntok = {}
        self.publish([self.otok], "s89")
        self.stamp("opub")
        for it in self.gu_more(self.opt.get("uE2", 0)):
            self.emit(it)
        assert len(self.guq) >= 12
        for j in range(8):
            A(f"v_lshlrev_b32 {v(vH + 2 * j)}, 16, {v(64 + j)}\nv_and_b32 {v(vH + 2 * j + 1)}, s66, {v(64 + j)}")
        A(f"v_bfe_u32 {v(vT + 2)}, {v(vL)}, 4, 1\nv_lshlrev_b32 {v(vT + 13)}, 2, {v(vT + 4)}\nv_lshl_add_u32 {v(vT + 13)}, {v(vT + 2)}, 3, {v(vT + 13)}")
        A(f"v_lshrrev_b32 {v(vT + 3)}, 5, {v(vL)}\nv_lshl_add_u32 {v(vT + 13)}, {v(vT + 3)}, 11, {v(vT + 13)}")
        A(f"s_lshl_b32 s65, {s(sT)}, 12\ns_lshl1_add_u32 s65, s94, s65\ns_lshl2_add_u32 s65, {s(sHP)}, s65\ns_add_u32 s65, s65, {WS_ST}")
        A(f"s_lshl_b32 s72, {s(sT)}, 7\ns_lshl3_add_u32 s72, {s(sHQ)}, s72\ns_lshl2_add_u32 s72, {s(sHP)}, s72\ns_add_u32 s72, s72, {WS_HF}")
        self.poll(vT + 11)
        self.stamp("opoll")
        otok = []
        ol = []
        for i in range(16):
            if i % 4 == 0 and i:
                ol.append("s_add_u32 s70, s70, 4096")
            ol.append(lambda i=i: otok.append(A(f"buffer_load_dwordx4 {a_(128 + 4 * i, 4)}, {v(vO16)}, {WS}, s70 offen offset:{(i & 3) * 1024} sc1")))
        side = ol + self.gu_more(self.opt.get("uF", 8))
        while len(otok) < 8:
            self.emit(side.pop(0))
        if self.woreads:
            A("s_waitcnt lgkmcnt(0)")
            if len(self.guq) < 12:
                A("s_barrier")
        for t in self.pair_setup():
            A(t)
        keep = lambda i: f"{MF32} {v(vH, 16)}, {a_(8 * i, 4)}, {a_(128 + 4 * i, 4)}, {v(vH, 16)}"
        lag = self.opt.get("wo_lag", 6)
        for i in range(16):
            A.wait(otok[i])
            A(f"{MF32} {v(aS, 16)}, {a_(8 * i + 4, 4)}, {a_(128 + 4 * i, 4)}, {v(aS, 16) if i else '0'}")
            if i < 16 - lag:
                A(keep(i))
            if side and not callable(side[0]):
                self.emit(side.pop(0))
            if side:
                self.emit(side.pop(0))
        for it in side:
            self.emit(it)
        self.stamp("womm")
        toks = self.pair_exchange(aS, rc, [keep(i) for i in range(16 - lag, 16)])
        pk = 112
        for hh in range(2):
            A.wait(toks[2 * hh + 1])
            for k in range(4 * hh, 4 * hh + 4):
                A(f"v_pk_add_f32 {v(vH + 2 * k, 2)}, {v(vH + 2 * k, 2)}, {v(rc + 2 * k, 2)}")
            for k in range(4 * hh, 4 * hh + 4):
                A(f"v_cvt_pk_bf16_f32 {v(pk + k)}, {v(vH + 2 * k)}, {v(vH + 2 * k + 1)}")
            A(f"buffer_store_dwordx4 {v(pk + 4 * hh, 4)}, {v(vO16)}, {WS}, s64 offen offset:{1024 * hh}{self.ohs}")
        su, sq = 120, 122
        A(f"v_pk_add_f32 {v(su, 2)}, {v(vH, 2)}, {v(vH + 2, 2)}\nv_pk_mul_f32 {v(sq, 2)}, {v(vH, 2)}, {v(vH, 2)}")
        A(f"v_pk_fma_f32 {v(sq, 2)}, {v(vH + 2, 2)}, {v(vH + 2, 2)}, {v(sq, 2)}")
        for k in range(2, 8):
            A(f"v_pk_add_f32 {v(su, 2)}, {v(su, 2)}, {v(vH + 2 * k, 2)}\nv_pk_fma_f32 {v(sq, 2)}, {v(vH + 2 * k, 2)}, {v(vH + 2 * k, 2)}, {v(sq, 2)}")
        A(f"v_add_f32 {v(su)}, {v(su)}, {v(su + 1)}\nv_add_f32 {v(sq)}, {v(sq)}, {v(sq + 1)}")
        A(f"v_permlane32_swap_b32 {v(su)}, {v(sq)}\nv_add_f32 {v(su)}, {v(su)}, {v(sq)}")
        tok = A(f"buffer_store_dword {v(su)}, {v(vT + 13)}, {WS}, s65 offen")
        self.stamp("hst")
        for it in self.gu_more(self.opt.get("uG1", 0)):
            self.emit(it)
        real, self.A = self.A, Asm()
        self.A(f"s_mul_i32 s63, {s(sHP)}, 14\ns_add_u32 s23, s63, {s(sE)}\ns_sub_u32 s80, s63, {s(sE)}\ns_add_u32 s80, s80, 1")
        self.A(f"s_lshl_b32 s81, s23, 12\ns_lshl_b32 s82, s80, 12\ns_lshl_b32 s83, s23, 2\ns_lshl_b32 s84, s80, 2")
        self.A(f"s_lshl_b32 s63, {s(sTT)}, 15\ns_add_u32 s63, s63, s94")
        self.A("s_lshl_b32 s23, s23, 16\ns_add_u32 s23, s23, s63\ns_lshl_b32 s80, s80, 16\ns_add_u32 s80, s80, s63")
        self.gu_setup()
        setup, self.A = self.A.lines, real
        n = self.opt.get("hpub_fill", 60)
        for t in setup[:n]:
            A(t)
        self.publish([tok], "s72")
        self.stamp("hpub")
        self.nres = sum(1 for j in range(8) if j in self.gtok and A.covered(self.gtok[j]))
        for it in self.gu_more(self.opt.get("uG2", 0)):
            self.emit(it)
        for t in setup[n:]:
            A(t)
        self.pthh = self.pretouch_hh()

    def pair_setup(self):
        return [f"s_add_u32 s63, {s(sW4K)}, {RED}", f"v_add_u32 {v(vT + 2)}, s63, {v(vO16)}", f"v_xor_b32 {v(vT + 3)}, 0x2000, {v(vT + 2)}"]

    def pair_exchange(self, aS, rc, mf):
        A = self.A
        toks = []
        steps = [None, None][:min(2, len(mf) // 3)]
        steps += [f"ds_write_b128 {v(vT + 2)}, {v(aS + 4 * k, 4)} offset:{k * 1024}" for k in range(4)]
        steps += [lambda: (A("s_waitcnt lgkmcnt(0)\ns_barrier"),
                           [toks.append(A(f"ds_read_b128 {v(rc + 4 * k, 4)}, {v(vT + 3)} offset:{k * 1024}")) for k in range(4)])]
        for m in mf:
            self.emit(m)
            if steps:
                st = steps.pop(0)
                if st:
                    self.emit(st)
        for st in steps:
            if st:
                self.emit(st)
        return toks

    def stats_loads(self, sTile, dst, store, key, n):
        A = self.A
        items = [f"s_lshl_b32 s61, {s(sTile)}, 12\ns_add_u32 s61, s61, {WS_ST}"]
        for i in range(n):
            t = f"buffer_load_dwordx4 {v(dst + 4 * i, 4)}, {v(vO16)}, {WS}, s61 offen offset:{i * 1024} sc1"
            items.append(lambda t=t: store.__setitem__(key, A(t)))
        return items

    def stats_reduce(self, src, out):
        L = [f"v_add_f32 {v(src + k)}, {v(src + k)}, {v(src + k + 1)}" for k in (0, 2, 4, 6)]
        L += [f"v_add_f32 {v(src)}, {v(src)}, {v(src + 4)}", f"v_add_f32 {v(src + 2)}, {v(src + 2)}, {v(src + 6)}",
              f"v_permlane16_swap_b32 {v(src)}, {v(src + 2)}", f"v_add_f32 {v(src)}, {v(src)}, {v(src + 2)}",
              f"v_mov_b32 {v(src + 2)}, {v(src)}", f"v_permlane32_swap_b32 {v(src)}, {v(src + 2)}",
              f"v_add_f32 {v(src)}, {v(src)}, {v(src + 2)}", f"v_mul_f32 {v(out)}, s67, {v(src)}"]
        return L

    def gu_reads(self, k):
        wf = 192 + 16 * (k & 1)
        grp, ks = k >> 2, k & 3
        hi = 4 if grp >= 4 else 0
        base = (grp & 3) * SLOT + ks * 2048
        return [f"ds_read_b64_tr_b16 {v(wf + 4 * cp + 2 * j, 2)}, {v(vGU + hi + cp)} offset:{base + j * 1024}" for cp in range(4) for j in range(2)]

    def gu_epilogue(self, acc, sbase, state):
        A = self.A
        L = []
        sc = ' sc1' if self.opt.get('hh_sc1', 3) & (1 if sbase == 87 else 2) else ''
        for cp in range(4):
            a0 = acc + 16 * cp
            L.append(f"s_xor_b32 s86, {s(sbase)}, {cp << 10}")
            L += [f"v_mul_f32 {v(a0 + r)}, {v(a0 + r)}, {v(a0 + 8 + r)}" for r in range(8)]
            L += [f"v_cvt_pk_bf16_f32 {v(a0 + 8 + r)}, {v(a0 + 2 * r)}, {v(a0 + 2 * r + 1)}" for r in range(4)]
            L.append(lambda a0=a0: state.__setitem__("st", A(f"buffer_store_dwordx4 {v(a0 + 8, 4)}, {v(vO16)}, {WS}, s86 offen{sc}" if not self.opt.get("x_st") else f"buffer_load_dword {v(vJ)}, off, {WS}, s97")))
        return L

    @staticmethod
    def split_mean(m, out):
        return [f"v_and_b32 {v(m + 1)}, s66, {v(m)}", f"v_sub_f32 {v(m)}, {v(m)}, {v(m + 1)}",
                f"v_permlane32_swap_b32 {v(m + 1)}, {v(m)}", f"v_cvt_pk_bf16_f32 {v(out)}, -{v(m + 1)}, -{v(m + 1)}"]

    def gu_setup(self):
        A = self.A
        sel = 228
        A(f"v_mov_b32 {v(vT + 2)}, {s(sT)}\nv_mov_b32 {v(vT + 3)}, {s(sTBB)}\nv_cmp_gt_u32 vcc, 32, {v(vL)}\nv_cndmask_b32 {v(vT + 2)}, {v(vT + 2)}, {v(vT + 3)}, vcc")
        A(f"v_mov_b32 {v(vT + 3)}, {s(sTA)}\nv_cmp_gt_u32 vcc, 16, {v(vL)}\nv_cndmask_b32 {v(vT + 2)}, {v(vT + 2)}, {v(vT + 3)}, vcc")
        A(f"v_lshl_add_u32 {v(vT + 2)}, {v(vT + 2)}, 7, {v(vT + 4)}\nv_add_u32 {v(vT + 5)}, {WS_HF}, {v(vT + 2)}")
        A(f"v_and_b32 {v(vT + 2)}, 31, {v(vL)}")
        for r in range(232, 250):
            A(f"v_mov_b32 {v(r)}, 0")
        A(f"s_lshl_b32 s63, {s(sW)}, 7\ns_add_u32 s63, s63, {RED}\nv_lshl_add_u32 {v(vT + 9)}, {v(vT + 2)}, 2, s63")
        A(f"v_lshrrev_b32 {v(vT + 2)}, 2, {v(vL)}\nv_xor_b32 {v(vT + 2)}, {v(vT + 2)}, {v(vL)}\nv_bfe_u32 {v(vT + 2)}, {v(vT + 2)}, 2, 1")
        A(f"v_subrev_u32 {v(vT + 2)}, 1, {v(vT + 2)}\nv_and_b32 {v(sel)}, {ONES}, {v(vT + 2)}")
        for k in range(1, 4):
            A(f"v_mov_b32 {v(sel + k)}, {v(sel)}")
        A(f"v_min_u32 {v(vT + 2)}, 6, {v(vL)}\nv_lshlrev_b32 {v(vT + 2)}, 3, {v(vT + 2)}")
        A(f"s_lshl_b32 s63, {s(sT)}, 7\ns_add_u32 s63, s63, {WS_HHF}\ns_add_u32 s83, s83, s63\ns_add_u32 s84, s84, s63")
        A(f"v_add_u32 {v(vT + 7)}, s83, {v(vT + 2)}\nv_add_u32 {v(vT + 8)}, s84, {v(vT + 2)}")
        A(f"s_mul_i32 s63, {s(sT)}, 114688\ns_add_u32 s63, s63, {WS_HH}\ns_add_u32 s81, s81, s63\ns_add_u32 s82, s82, s63")
        for tile, sb, sf, sh in ((sTA, 87, 89, 97), (sTBB, 88, 90, 98)):
            A(f"s_mul_i32 s{sb}, {s(tile)}, 114688\ns_lshl_b32 s63, {s(sC)}, 12\ns_add_u32 s{sb}, s{sb}, s63\ns_add_u32 s{sb}, s{sb}, {WS_HH}\ns_lshl_b32 s63, {s(sW)}, 10\ns_add_u32 s{sb}, s{sb}, s63")
            A(f"s_lshl_b32 s{sf}, {s(tile)}, 7\ns_lshl_b32 s63, {s(sC)}, 2\ns_add_u32 s{sf}, s{sf}, s63\ns_add_u32 s{sf}, s{sf}, {WS_HHF}")
            A(f"s_lshl_b32 s{sh}, {s(tile)}, 15\ns_add_u32 s{sh}, s{sh}, {WS_H}\ns_lshl_b32 s63, s99, 12\ns_add_u32 s{sh}, s{sh}, s63")

    def frag_stream(self, n, areg, sreg, setup, toks, early, dead):
        A = self.A
        out = []
        for k in range(n):
            t = f"buffer_load_dwordx4 {a_(areg + 4 * k, 4)}, {v(vO16)}, {WS}, s{sreg} offen offset:{(k & 3) * 1024} sc1"
            items = [setup(k >> 2)] if k % 4 == 0 else []
            items.append(lambda t=t, k=k: toks.__setitem__(k, A(t)))
            out.append([early, dead(k), items])
        return out

    @staticmethod
    def grp_units(items, early, dead):
        return [[early, dead, items[:2]]] + [[early, dead, [t]] for t in items[2:]]

    def spent(self, mark):
        c = 0
        for n, ln in enumerate(self.A.lines[mark:]):
            op = ln.split()[0]
            if op.endswith(":") or op.startswith(";"):
                continue
            if op.startswith("s_"):
                c += 0 if n == 0 else 4
            elif op.startswith("buffer_store") or op == "ds_write_b128":
                c += 20
            elif op.startswith(("buffer_", "v_mfma", "v_permlane", "v_exp", "v_rcp", "v_rsq")):
                c += 8
            else:
                c += 4
        return c

    def vm_slot(self, pos, cycles, mark=None, budget=24, early_ok=False):
        self.credit = min(self.credit + cycles / self.opt.get("pace", 60.0), 2.0)
        n = 0
        while n < 2:
            best = None
            for q in self.streams.values():
                if q and (early_ok or q[0][0] <= pos) and (best is None or q[0][1] < best[0][1]):
                    best = q
            if best is None:
                return
            urgent = best[0][1] - self.opt.get("lead", 24) <= pos
            its = best[0][2]
            if not callable(its[0]):
                lines = its[0].split("\n")
                while lines and (mark is None or self.spent(mark) + 4 <= budget):
                    self.A(lines.pop(0))
                if lines:
                    its[0] = "\n".join(lines)
                    return
                its.pop(0)
            if self.credit < 1.0 and not urgent:
                return
            if mark is not None and self.spent(mark) + 8 > budget and not (urgent and n == 0):
                return
            for it in best.pop(0)[2]:
                self.emit(it)
            self.credit = max(self.credit - 1.0, -1.0)
            n += 1

    def side(self, items, mark, budget=24):
        while items and self.spent(mark) + 4 <= budget:
            self.emit(items.pop(0))

    def vm_force(self, name, toks, key, whole=False):
        q = self.streams[name]
        while key not in toks or (whole and q and q[0][3:] == [key]):
            for it in q.pop(0)[2]:
                self.emit(it)
        return toks[key]

    def gu(self):
        A = self.A
        o = self.opt
        accA, accB, csa, sel = 64, 128, 224, 228
        mA = 250
        npre = 4 * self.nres
        if npre:
            A("s_barrier")
            tk = {}
            for k in range(npre + 4):
                if k < npre:
                    base = (k >> 2 & 3) * SLOT + (k & 3) * 2048
                    for j in range(2):
                        tk[k] = A(f"ds_read_b64_tr_b16 {v(192 + 4 * (k & 7) + 2 * j, 2)}, {v(vGU + (4 if k >= 16 else 0))} offset:{base + j * 1024}")
                if k >= 4:
                    A.wait(tk[k - 4])
                    A(f"{MF16} {v(csa, 4)}, {v(sel, 4)}, {v(192 + 4 * (k - 4 & 7), 4)}, {v(csa, 4) if k > 4 else '0'}")
            rt = {}
            for n in range(4):
                for j in range(2):
                    rt[n] = A(f"ds_read_b64_tr_b16 {v(192 + 4 * n + 2 * j, 2)}, {v(vGU + n)} offset:{j * 1024}")
        self.poll(vT + 5)
        self.stamp("hpoll")
        A(f"s_cmp_ge_u32 {s(sC)}, 28\ns_cbranch_scc1 L_spare")
        h1, h2, self.he, self.hl, stt = {}, {}, {}, {}, {}
        INF, DN0 = 10 ** 6, 272
        cA, bA, bB = 232, 242, 246
        J, tA, tB = 4 * o.get("split", 4), o.get("tailA", 8), o.get("tail", 4)
        seq, fr = [], []
        for k in range(J):
            for cp in range(4):
                seq += [(0, k, cp), (1, k, cp)]
                fr += [4 * k + cp] * 2
        for t, tl in ((0, tA), (1, tB)):
            part = [(t, k, cp) for k in range(J, 32 - tl) for cp in range(4)] + [(t, k, cp) for cp in range(4) for k in range(32 - tl, 32)]
            fr += [len(set(fr)) + n for n in range(len(part))]
            seq += part
        first_use = {}
        for n, f in enumerate(fr):
            first_use.setdefault(f, n)
        hfirst = lambda t: (lambda k: min(n for n, e in enumerate(seq) if e[:2] == (t, k)))
        lastuse = {j: max(n for n, e in enumerate(seq) if e[1] >> 2 == j) for j in range(8)}
        lastacc = {(t, cp): max(n for n, e in enumerate(seq) if (e[0], e[2]) == (t, cp)) for t in range(2) for cp in range(4)}
        wreg = lambda f: 192 + 4 * (f & 7)

        rot = lambda base, reg: (lambda j: f"s_xor_b32 s{reg}, s{base}, {j << 12}")
        late = list(range(self.nres, 8))
        span = hfirst(0)(28) - o.get("glead", 28)
        for n, u in enumerate(self.guq):
            u[0] = min(span / max(len(self.guq), 1), o.get("gpace", 7)) * n
        dma = []
        for st in range(14):
            early = 0 if st == 0 else INF if st <= 8 else DN0 + 8 * (st - 8) + 4
            dma += [u + [("d", st)] for u in self.grp_units(self.dn_dma(st), early, DN0 + 8 * st - o.get("dlead", 30))]
        pc = lastacc[(0, 0)]
        s0 = pc - o.get("stat_lead", 60)
        self.streams = {
            "h1": self.frag_stream(32, 0, 70, rot(97, 70), h1, 0, hfirst(0)),
            "h2": self.frag_stream(32, 128, 71, rot(98, 71), h2, 0, hfirst(1)),
            "gu": self.guq, "dma": dma,
            "stats": self.grp_units(self.stats_loads(sTA, cA, stt, 0, 2), 0, s0) + self.grp_units(self.stats_loads(sTBB, cA, stt, 1, 2), INF, s0 + 30),
            "he": self.frag_stream(28, 0, 70, lambda j: self.rot7(70, j, 13, 81), self.he, INF, lambda k: DN0 + 2 * k),
            "hl": self.frag_stream(28, 128, 71, lambda j: self.rot7(71, j, 13, 82), self.hl, INF, lambda k: DN0 + 56 + 2 * k),
        }
        self.credit = 0.0
        for n in range(o.get("h_burst", 8)):
            if J:
                self.vm_force(("h1", "h2")[n & 1], (h1, h2)[n & 1], n >> 1)
            else:
                self.vm_force("h1", h1, n)

        def force_group(kind, idx, toks):
            q = self.streams["dma" if kind == "d" else "gu"]
            while any(u[3] == (kind, idx) for u in q):
                for it in q.pop(0)[2]:
                    self.emit(it)
            return toks[idx]
        self.force_group = force_group

        def barrier(n):
            A("s_barrier")
            for u in dma:
                st = u[3][1]
                if 1 <= st <= 8 and lastuse[st - 1] <= n:
                    u[0] = 0

        def force_stats(n):
            q = self.streams["stats"]
            while len(q) > 2 - 2 * n:
                for it in q.pop(0)[2]:
                    self.emit(it)
            A.wait(stt[n])

        def open_stats():
            for u in self.streams["stats"]:
                u[0] = 0

        state, stB, cst = {}, {}, {}
        ev = {}
        at = lambda n, f: ev.setdefault(n, []).append(f)
        items = []
        at(s0, lambda n: items.extend([lambda: force_stats(0)] + self.stats_reduce(cA, mA) + [open_stats] + self.split_mean(mA, bA)))
        at(s0 + 30, lambda n: items.extend([lambda: force_stats(1)] + self.stats_reduce(cA, mA) + self.split_mean(mA, bB) +
                                           [f"v_mov_b32 {v(cA + r)}, 0" for r in (1, 3, 5, 7)]))
        at(pc + 2, lambda n: items.extend(
            [f"v_and_b32 {v(csa + 1)}, s66, {v(csa)}", f"v_sub_f32 {v(csa)}, {v(csa)}, {v(csa + 1)}", f"v_cvt_pk_bf16_f32 {v(csa)}, {v(csa + 1)}, {v(csa)}",
             lambda: cst.__setitem__("w", A(f"ds_write_b32 {v(vT + 9)}, {v(csa)}"))] +
            [f"v_xor_b32 {v(csa + cp)}, {cp << 7}, {v(vT + 9)}" for cp in range(1, 4)]))

        def cs_reads(n):
            assert not items
            A.wait(cst["w"])
            barrier(n)
            for cp in range(4):
                cst["r"] = A(f"ds_read_b32 {v(cA + 2 * cp)}, {v(csa + cp) if cp else v(vT + 9)}")
        at(pc + 6, cs_reads)
        fix = lambda acc, b: [f"{MF32} {v(acc + 16 * cp, 16)}, {v(cA + 2 * cp, 4)}, {v(b, 4)}, {v(acc + 16 * cp, 16)}" for cp in range(4)]
        pf = pc + 10
        extra = {pf: fix(accA, bA), max(pf + 8, hfirst(1)(0) + 8): fix(accB, bB)}
        epA, epB = self.gu_epilogue(accA, 87, state), self.gu_epilogue(accB, 88, stB)
        pe = 0
        for cp in range(4):
            pe = max(lastacc[(0, cp)] + 3, pf + 2, pe + o.get("st_gap", 4))
            at(pe, lambda n, cp=cp: items.extend(epA[14 * cp:14 * cp + 14]))
            if lastacc[(1, cp)] + 3 < 256:
                at(lastacc[(1, cp)] + 3, lambda n, cp=cp: items.extend(epB[14 * cp:14 * cp + 14]))
        restB = sum((epB[14 * cp:14 * cp + 14] for cp in range(4) if lastacc[(1, cp)] + 3 >= 256), [])

        def chk(n):
            self.poll_check(state["p"], vT + 7, vT + 10)
            self.stamp("hepoll")
            for u in self.streams["he"]:
                u[0] = 0
        pp = pe + 5 + o.get("pub_lag", 20)
        chain = [(pp, lambda n: self.publish([state["st"]], "s89")),
                 (pp + o.get("poll_lag", 12), lambda n: state.__setitem__("p", self.poll_issue(vT + 7, vT + 10))),
                 (pp + o.get("poll_lag", 12) + o.get("chk_lag", 16), chk)]
        for n, f in chain:
            at(n, f)
        for j in range(8):
            if j >= r_from(J) and lastuse[j] + 1 < 256 - 4 * tB + 2:
                at(lastuse[j] + 1, barrier)

        nread = [4]

        def reads(n):
            while nread[0] in first_use and first_use[nread[0]] <= n + 4:
                f = nread[0]
                _, k, cp = seq[first_use[f]]
                if k >> 2 in late:
                    late.remove(k >> 2)
                    A.wait(force_group("g", k >> 2, self.gtok))
                    barrier(n)
                base = (k >> 2 & 3) * SLOT + (k & 3) * 2048
                for j in range(2):
                    rt[f] = A(f"ds_read_b64_tr_b16 {v(wreg(f) + 2 * j, 2)}, {v(vGU + (4 if k >= 16 else 0) + cp)} offset:{base + j * 1024}")
                nread[0] += 1

        def need(n):
            t, k, cp = seq[n]
            return [rt[fr[n]], self.vm_force(("h1", "h2")[t], (h1, h2)[t], k)]

        A.wait(*need(0))
        for n in range(256):
            t, k, cp = seq[n]
            acc = (accA, accB)[t] + 16 * cp
            A(f"{MF32} {v(acc, 16)}, {v(wreg(fr[n]), 4)}, {a_(128 * t + 4 * k, 4)}, {v(acc, 16) if k else '0'}")
            mark = len(A.lines)
            if n < 255:
                A.wait(*need(n + 1))
            for f in ev.pop(n, []):
                f(n)
            reads(n)
            cs = t == 0 and cp == 0 and k >= npre
            self.vm_slot(n, 48 if cs else 32, mark)
            self.side(items, mark)
            if cs:
                A(f"{MF16} {v(csa, 4)}, {v(sel, 4)}, {v(wreg(fr[n]), 4)}, {v(csa, 4) if k else '0'}")
                self.side(items, len(A.lines), 8)
            for m in extra.get(n, ()):
                A.wait(cst["r"])
                A(m)
                mark = len(A.lines)
                self.vm_slot(n, 32, mark)
                self.side(items, mark)
            if n % 16 == 15 or n == 0:
                self.stamp(f"a{n}", "gu")
            if n == 127:
                self.stamp("gu1")
        self.stamp("gu2")
        barrier(256)
        for it in items + restB:
            self.emit(it)
            self.vm_slot(256, o.get("epi_cyc", 4.5))
        for n in sorted(ev):
            for f in ev[n]:
                f(n)
        self.vm_force("he", self.he, o.get("he_burst", 8) - 1)
        self.m0_owner = None
        self.left = {}
        for name in ("he", "dma"):
            q = self.streams[name]
            head = q[0][2][0] if q else None
            self.left[name] = (len(q), 0 if head is None or callable(head) else len(head.split("\n")))
        self.n_dn = 14 - (self.left["dma"][0] + 3) // 4
        self.sttok = stB["st"]
        self.stamp("gupub")
        A.label("L_down")

    def spare(self):
        A = self.A
        A.label("L_spare")
        self.m0_owner = None
        A("s_waitcnt lgkmcnt(0)\ns_barrier")
        if self.opt.get("spare_warm", 2) == 2:
            self.spare_warm()
        ln = self.lab("ne")
        A(f"s_cmp_lg_u32 s2, 248\ns_cbranch_scc1 {ln}\ns_cmp_lg_u32 {s(sW)}, 0\ns_cbranch_scc1 {ln}")
        for q in range(4):
            A(f"v_and_b32 {v(vT + 2)}, 3, {v(vL)}\nv_bfe_u32 {v(vT + 3)}, {v(vL)}, 2, 3\nv_lshlrev_b32 {v(vT + 2)}, 8, {v(vT + 2)}")
            A(f"v_lshl_add_u32 {v(vT + 2)}, {v(vT + 3)}, 11, {v(vT + 2)}\nv_lshrrev_b32 {v(vT + 3)}, 5, {v(vL)}")
            A(f"v_lshl_add_u32 {v(vT + 2)}, {v(vT + 3)}, 21, {v(vT + 2)}\nv_add_u32 {v(vT + 2)}, {WS_KVF + q * 2 * OWN}, {v(vT + 2)}")
            self.poll(vT + 2, acquire=False)
        A(f"s_mov_b32 s63, {WS_E}")
        A(f"buffer_store_dword {v(vTAG)}, off, {WS}, s63 sc1")
        A.label(ln)
        if self.opt.get("spare_pf", 0):
            A(f"s_and_b32 s63, {s(sC)}, 3\ns_lshl_b32 s63, s63, 2\ns_add_u32 s63, s63, {s(sW)}")
            A(f"s_and_b32 s73, s63, 7\ns_lshl_b32 s73, s73, 13\ns_lshr_b32 s63, s63, 3\ns_mul_i32 s63, s63, {14 * 65536}\ns_add_u32 s73, s73, s63")
            A(f"v_lshlrev_b32 {v(vT + 2)}, 7, {v(vL)}")
            for n in range(14):
                A(f"buffer_load_dword {v(vJ)}, {v(vT + 2)}, {WD}, s73 offen\ns_add_u32 s73, s73, 65536")
        def claim(ph):
            A(f"s_and_b32 s63, {s(sC)}, 3\ns_lshl2_add_u32 s63, s63, {s(sW)}\ns_lshr_b32 s73, s63, 1\ns_lshr_b32 s74, s73, 2\ns_xor_b32 s74, s74, {ph}")
            A(f"s_mul_i32 s73, s73, 114688\ns_and_b32 s63, s63, 1\ns_mul_i32 s63, s63, 14\ns_add_u32 s63, s63, s74")
            A(f"s_lshl_b32 s63, s63, 12\ns_add_u32 s73, s73, s63\ns_add_u32 s73, s73, {WS_HH}")
            A(f"v_and_b32 {v(vT + 2)}, 31, {v(vL)}\nv_lshrrev_b32 {v(vT + 3)}, 5, {v(vL)}\nv_lshlrev_b32 {v(vT + 2)}, 7, {v(vT + 2)}\nv_lshl_add_u32 {v(vT + 3)}, {v(vT + 3)}, 13, {v(vT + 2)}")
            for n in range(4):
                A(f"buffer_load_dword {v(vJ)}, {v(vT + (3 if n < 3 else 2))}, {WS}, s73 offen sc1\ns_add_u32 s73, s73, 16384")
        cl = self.opt.get("claim", 0)
        if cl & 1:
            claim(0)
        if cl & 2:
            claim(1)

        def replay(units, name):
            n, lines = self.left[name]
            for u in units[:len(units) - n]:
                for it in u[2]:
                    self.emit(it)
            if n and not callable(units[-n][2][0]):
                su = units[-n][2][0].split("\n")
                for t in su[:len(su) - lines]:
                    A(t)
        replay(sum((self.grp_units(self.dn_dma(st), 0, 0) for st in range(14)), []), "dma")
        if cl & 4:
            claim(1)
        self.poll(vT + 7)
        replay(self.frag_stream(28, 0, 70, lambda j: self.rot7(70, j, 13, 81), {}, 0, lambda k: 0), "he")
        A("s_waitcnt vmcnt(0)\ns_branch L_down")

    def dn_reads(self, k):
        wf = 192 + 8 * (k & 3)
        st, ks = k >> 2, k & 3
        slot = (8 + st) % 9
        rng = slot >> 2
        base = (slot & 3) * SLOT + ks * 2048
        return [f"ds_read_b64_tr_b16 {v(wf + 4 * ct + 2 * j, 2)}, {v(vDN + 2 * rng + ct)} offset:{base + j * 1024}" for ct in range(2) for j in range(2)]

    def down(self):
        A = self.A
        o = self.opt
        aK, aS, rc, mD, DN0 = 64, 80, 96, 252, 272
        A.wait(self.dntok[0])
        A("s_barrier")
        seen = max(st for st in range(self.n_dn) if A.covered(self.dntok[st]))
        dt = o.get("dn_tail", 8)
        seq = [(k, ct) for k in range(56 - dt) for ct in (1, 0)] + [(k, ct) for ct in (1, 0) for k in range(56 - dt, 56)]
        wreg = lambda n: 192 + 4 * (n & 7)
        rt = {}

        def reads(n):
            k, ct = seq[n]
            slot = (8 + (k >> 2)) % 9
            for j in range(2):
                rt[n] = A(f"ds_read_b64_tr_b16 {v(wreg(n) + 2 * j, 2)}, {v(vDN + 2 * (slot >> 2) + ct)} offset:{(slot & 3) * SLOT + (k & 3) * 2048 + j * 1024}")
        for n in range(4):
            reads(n)
        stt = {}
        self.streams["stats"] = self.grp_units(self.stats_loads(sT, 232, stt, 0, 4), 0, DN0 + o.get("dstat", 100))
        for u in self.streams["hl"]:
            u[1] = min(u[1], DN0 + 2 * (56 - dt) + (u[1] - DN0) // 2 - (56 - dt))
        lb = o.get("late_pub", 8)
        lp, lc = lb + o.get("late_issue", 5), lb + o.get("late_check", 11)
        hneed = lambda k: self.vm_force("he", self.he, k) if k < 28 else self.vm_force("hl", self.hl, k - 28)
        hf = lambda k: a_(4 * k, 4) if k < 28 else a_(128 + 4 * (k - 28), 4)
        items = []
        st8 = {"seen": seen, "step": 0}

        def mfma(n):
            k, ct = seq[n]
            acc = aS if ct else aK
            A(f"{MF32} {v(acc, 16)}, {v(wreg(n), 4)}, {hf(k)}, {v(acc, 16) if k else '0'}")
            mark = len(A.lines)
            if n + 1 < 112:
                A.wait(rt[n + 1], hneed(seq[n + 1][0]))
            if n + 4 < 112:
                st = seq[n + 4][0] >> 2
                if st > st8["step"]:
                    st8["step"] = st
                    if st > st8["seen"]:
                        A.wait(self.force_group("d", st, self.dntok))
                    if st > st8["seen"] or (st >= 2 and st + 7 < 14):
                        A("s_barrier")
                        st8["seen"] = max(x for x in range(14) if x in self.dntok and A.covered(self.dntok[x]))
            if n == 2 * lb:
                ls = self.lab("np")
                A.wait(self.sttok)
                A(f"s_cmp_ge_u32 {s(sC)}, 28\ns_cbranch_scc1 {ls}")
                self.publish([], "s90")
                A.vm_issued -= 1
                A.label(ls)
            if n == 2 * lp:
                st8["p"] = self.poll_issue(vT + 8, vT + 10)
            if n == 2 * lc:
                self.poll_check(st8["p"], vT + 8, vT + 10)
                self.stamp("hlpoll")
                for u in self.streams["hl"]:
                    u[0] = 0
            if n + 4 < 112:
                reads(n + 4)
            self.vm_slot(DN0 + n, o.get("dn_cyc", 40), mark)
            self.side(items, mark)
            if n % 8 == 7:
                self.stamp(f"d{n // 2}", "dn")

        A.wait(rt[0], hneed(0))
        for n in range(112 - dt):
            if n == 112 - 2 * dt:
                while self.streams["stats"]:
                    for it in self.streams["stats"].pop(0)[2]:
                        self.emit(it)
                items += self.pair_setup()
                items += [f"v_and_b32 {v(vT + 4)}, 31, {v(vL)}", f"v_lshrrev_b32 {v(vT + 5)}, 5, {v(vL)}", f"v_lshlrev_b32 {v(vT + 4)}, 10, {v(vT + 4)}",
                          f"v_lshl_add_u32 {v(vT + 4)}, {v(vT + 5)}, 4, {v(vT + 4)}", lambda: A.wait(stt[0])]
                for ta, tb in zip(self.stats_reduce(232, mD), self.stats_reduce(240, mD + 1)):
                    items += [ta, tb]
                items += [f"v_fma_f32 {v(mD + 1)}, -{v(mD)}, {v(mD)}, {v(mD + 1)}", f"v_max_f32 {v(mD + 1)}, 0, {v(mD + 1)}",
                          f"v_add_f32 {v(mD + 1)}, s68, {v(mD + 1)}", f"v_rcp_f32 {v(mD)}, {v(mD + 1)}"]
            mfma(n)
        assert not any(self.streams.values())
        toks = self.pair_exchange(aS, rc, [(lambda n=n: mfma(n)) for n in range(112 - dt, 112)])
        for it in items:
            self.emit(it)
        self.stamp("dnmm")
        pk = 112
        for hh in range(2):
            A.wait(toks[2 * hh + 1])
            for k in range(4 * hh, 4 * hh + 4):
                A(f"v_pk_add_f32 {v(aK + 2 * k, 2)}, {v(aK + 2 * k, 2)}, {v(rc + 2 * k, 2)}")
            for k in range(4 * hh, 4 * hh + 4):
                A(f"v_pk_fma_f32 {v(aK + 2 * k, 2)}, {v(aK + 2 * k, 2)}, {v(mD, 2)}, {v(vH + 2 * k, 2)} op_sel_hi:[1,0,1]")
            for k in range(4 * hh, 4 * hh + 4):
                A(f"v_cvt_pk_bf16_f32 {v(pk + k)}, {v(aK + 2 * k)}, {v(aK + 2 * k + 1)}")
            A(f"v_permlane32_swap_b32 {v(pk + 4 * hh)}, {v(pk + 4 * hh + 2)}\nv_permlane32_swap_b32 {v(pk + 4 * hh + 1)}, {v(pk + 4 * hh + 3)}")
            A(f"buffer_store_dwordx4 {v(pk + 4 * hh, 4)}, {v(vT + 4)}, {OUT}, s20 offen offset:{hh * 32}{o.get('out_fl', '')}")
        self.stamp("end")

    def build(self):
        A = self.A
        k = NAME + "_kernel"
        self.prologue()
        self.ln1()
        self.qkv()
        self.attention()
        self.wo()
        self.gu()
        self.down()
        self.finish_kernel()
        self.spare()
        self.emit_tail()
        self.truemax()
        A.label("L_exit")
        A("s_endpgm")
        body = A.finish(verbose=self.opt.get("verbose", False))
        ref = open(f"cdna_kernels/{NAME}.s.ref").read().split("\n") if not self.listform else []
        head = [ln for ln in ref if ln.startswith(";") and "@launch" not in ln and "Override" not in ln and "grid=ceil" not in ln]
        launch = f"; @launch {'kernel=' + k + ' ' if self.listform else ''}grid=(256,1,1) block=(256,1,1) lds=163840"
        return "\n".join(head + [launch, '.amdgcn_target "amdgcn-amd-amdhsa--gfx950"', ".text", f".globl {k}", ".p2align 8",
                                 f".type {k},@function", f"{k}:", body,
                                 "; padding: the text prefetch at entry reads 41 KiB from the kernel start",
                                 f".fill {self.opt.get('padw', 2560)}, 4, 0xbf800000",
                                 '.section .rodata,"a"', ".p2align 6", f".amdhsa_kernel {k}",
                                 "  .amdhsa_next_free_vgpr 512", "  .amdhsa_next_free_sgpr 102", "  .amdhsa_accum_offset 256",
                                 "  .amdhsa_group_segment_fixed_size 0", "  .amdhsa_kernarg_size 80", "  .amdhsa_user_sgpr_count 2",
                                 "  .amdhsa_user_sgpr_kernarg_segment_ptr 1", "  .amdhsa_system_sgpr_workgroup_id_x 1",
                                 ".end_amdhsa_kernel", ""])


if __name__ == "__main__":
    g = Gen(opt={"verbose": "-v" in sys.argv})
    txt = g.build()
    out = f"cdna_kernels/{NAME}.s"
    open(out, "w").write(txt)
    print("wrote", out, len(txt), "bytes; hazard pad states", g.A.pad_states)
```
